```python
import torch

def _softmax(x, axis=-1):
    return torch.softmax(x, dim=axis)
def _gelu(x):
    return torch.nn.functional.gelu(x, approximate="tanh")
def _silu(x):
    return torch.nn.functional.silu(x)
def _sigmoid(x):
    return torch.sigmoid(x)
def _layernorm(x, axis=-1, eps=1e-5):
    m = x.mean(dim=axis, keepdim=True)
    v = x.var(dim=axis, keepdim=True, unbiased=False)
    return (x - m) / torch.sqrt(v + eps)
def _scatter_add(tgt, idx, src, axis=0):
    return tgt.clone().index_add_(axis, idx, src)
def _segment_sum(src, seg, n):
    out = torch.zeros((n,) + src.shape[1:], dtype=src.dtype)
    return out.index_add_(0, seg, src)
def _pad(x, pw):
    flat = tuple(v for pair in reversed(pw) for v in pair)
    return torch.nn.functional.pad(x, flat)

kernel_name = 'gated_mix__softmax_full_mha__swiglu_ffn__prompt'

def setup_inputs():

    _w = (lambda a: (lambda t: t.to(torch.bfloat16) if t.is_floating_point() else t)(torch.as_tensor(a)))
    def _A_setup():
        B, S, D = 1, 2048, 512
        return {
            "x": _w((lambda *s: torch.randn(*s, dtype=torch.bfloat16) * 0.05)(B, S, D)),
            "wqkv": _w((lambda *s: torch.randn(*s, dtype=torch.bfloat16) * 0.8)(D, 3 * D)),
            "wo": _w((lambda *s: torch.randn(*s, dtype=torch.bfloat16) * 0.05)(D, D)),
        }
    _A_in = _A_setup()

    def _B_setup():
        B, S, D, F = 1, 2048, 512, 1376
        return {
            "x": _w((lambda *s: torch.randn(*s, dtype=torch.bfloat16) * 0.05)(B, S, D)),
            "w_gate": _w((lambda *s: torch.randn(*s, dtype=torch.bfloat16) * 0.1)(D, F)),
            "w_up": _w((lambda *s: torch.randn(*s, dtype=torch.bfloat16) * 0.1)(D, F)),
            "w_down": _w((lambda *s: torch.randn(*s, dtype=torch.bfloat16) * 0.1)(F, D)),
        }
    _B_in = _B_setup()

    return {
        "A_x": _A_in["x"],
        "A_wqkv": _A_in["wqkv"],
        "A_wo": _A_in["wo"],
        "B_x": _B_in["x"],
        "B_w_gate": _B_in["w_gate"],
        "B_w_up": _B_in["w_up"],
        "B_w_down": _B_in["w_down"],
        "gate_w": _w((lambda *s: torch.randn(*s, dtype=torch.bfloat16) * 0.05)(512) * 16.0),
    }

def reference(A_x, A_wqkv, A_wo, B_x, B_w_gate, B_w_up, B_w_down, gate_w):
    def _A_ref(x, wqkv, wo):
        B, S, D = x.shape
        H = 32; Dh = D // H
        qkv = (lambda x, *d: x.permute(*d))((x @ wqkv).reshape(B, S, 3, H, Dh), 2, 0, 3, 1, 4)
        q, k, v = qkv[0], qkv[1], qkv[2]
        scale = Dh ** -0.5
        scores = torch.einsum("bhqd,bhkd->bhqk", q, k) * scale
        p = _softmax(scores, axis=-1)
        o = torch.einsum("bhqk,bhkd->bhqd", p, v)
        return (lambda x, *d: x.permute(*d))(o, 0, 2, 1, 3).reshape(B, S, D) @ wo

    def _B_ref(x, w_gate, w_up, w_down):
        g = _silu(x @ w_gate)
        u = x @ w_up
        return (g * u) @ w_down

    x = A_x
    g = _sigmoid((x * gate_w).sum(-1, keepdims=True))
    a = _A_ref(x, A_wqkv, A_wo)
    b = _B_ref(x, B_w_gate, B_w_up, B_w_down)
    return g * a + (1 - g) * b
```

```python
import re

TRANS = ('v_exp_f32', 'v_log_f32', 'v_rcp_f32', 'v_rsq_f32', 'v_sqrt_f32', 'v_sin_f32', 'v_cos_f32',
         'v_exp_f16', 'v_rcp_f16', 'v_rcp_iflag_f32')
_reg_re = re.compile(r'\b([vsa])(\d+)\b|\b([vsa])\[(\d+):(\d+)\]|\b(vcc|exec|m0|scc)\b')

def regs_of(tok):
    out = set()
    for m in _reg_re.finditer(tok):
        if m.group(1):
            out.add((m.group(1), int(m.group(2))))
        elif m.group(3):
            for i in range(int(m.group(4)), int(m.group(5)) + 1):
                out.add((m.group(3), i))
        else:
            out.add((m.group(6), 0))
    return out

def split_ops(s):
    ops, depth, cur = [], 0, ''
    for ch in s:
        if ch == '[': depth += 1
        if ch == ']': depth -= 1
        if ch == ',' and depth == 0:
            ops.append(cur.strip()); cur = ''
        else:
            cur += ch
    if cur.strip(): ops.append(cur.strip())
    return ops

class Ins:
    __slots__ = ('text', 'op', 'dst', 'src', 'kind', 'passes', 'srcC', 'srcAB', 'ws', 'storedata', 'wide')
    pass

def parse(text):
    t = text.strip()
    i = Ins(); i.text = t
    sp = t.split(None, 1)
    op = sp[0]; rest = sp[1] if len(sp) > 1 else ''
    ops = split_ops(rest)
    i.op = op; i.dst = set(); i.src = set(); i.passes = 0; i.srcC = set(); i.srcAB = set(); i.ws = 1
    i.storedata = set(); i.wide = False
    R = [regs_of(o.split(' ')[0]) if k < len(ops) - 1 else regs_of(o.split(' ')[0]) for k, o in enumerate(ops)]
    if op.startswith('v_mfma'):
        i.kind = 'mfma'
        i.passes = 8 if '32x32' in op else 4
        i.dst = R[0]; i.srcAB = R[1] | R[2]; i.srcC = R[3] if len(R) > 3 else set()
        i.src = i.srcAB | i.srcC
    elif op.startswith('v_'):
        i.kind = 'valu'
        if op.startswith('v_cmp'):
            i.dst = R[0]; i.src = set().union(*R[1:]) if len(R) > 1 else set()
            if op.startswith('v_cmpx'): i.dst = i.dst | {('exec', 0)}
        elif 'permlane' in op and 'swap' in op:
            i.dst = R[0] | R[1]; i.src = R[0] | R[1]
        elif op.startswith('v_add_co') or op.startswith('v_sub_co') or op.startswith('v_addc_co') or op.startswith('v_subb_co') or op.startswith('v_mad_u64'):
            i.dst = R[0] | R[1]; i.src = set().union(*R[2:])
        else:
            i.dst = R[0]; i.src = set().union(*R[1:]) if len(R) > 1 else set()
            if op.startswith('v_fmac') or op.startswith('v_dot2c') or 'UNUSED_PRESERVE' in t or '_dpp' in op or 'row_' in t or 'quad_perm' in t:
                i.src = i.src | R[0]
            if op.startswith('v_cndmask') and len(ops) == 3: i.src = i.src | {('vcc', 0)}
            if op.startswith('v_writelane'): i.src = i.src | R[0]
    elif op.startswith('s_'):
        i.kind = 'salu'
        if op == 's_nop':
            i.ws = int(rest.strip(), 0) + 1
        elif op.startswith('s_waitcnt') or op.startswith('s_barrier') or op.startswith('s_cbranch') or op.startswith('s_branch') or op in ('s_endpgm', 's_setprio', 's_sleep'):
            pass
        elif op.startswith('s_cmp') or op.startswith('s_bitcmp'):
            i.src = set().union(*R)
        elif op.startswith('s_load') or op.startswith('s_memtime') or op.startswith('s_memrealtime'):
            i.kind = 'smem'; i.dst = R[0]; i.src = set().union(*R[1:]) if len(R) > 1 else set()
        elif op.startswith('s_setpc'):
            i.src = R[0]
        else:
            i.dst = R[0]; i.src = set().union(*R[1:]) if len(R) > 1 else set()
            if 'saveexec' in op: i.dst = i.dst | {('exec', 0)}
    elif op.startswith('ds_'):
        i.kind = 'ds'
        if op.startswith('ds_read') or 'rtn' in op or op.startswith('ds_bpermute') or op.startswith('ds_permute') or op.startswith('ds_swizzle'):
            i.dst = R[0]; i.src = set().union(*R[1:])
        else:
            i.src = set().union(*R)
    elif op.startswith('buffer_') or op.startswith('global_'):
        i.kind = 'vmem'
        words = t.replace(',', ' ').split()
        is_lds = 'lds' in words or '_lds_' in op
        if op in ('buffer_wbl2', 'buffer_inv'):
            pass
        elif 'store' in op:
            i.src = set().union(*R)
            data = R[0] if op.startswith('buffer_') else R[1]
            i.storedata = data; i.wide = ('x4' in op or 'x3' in op)
        elif 'atomic' in op:
            i.src = set().union(*R)
            if 'sc0' in words: i.dst = R[0]
        elif is_lds:
            i.src = set().union(*R) | {('m0', 0)}
            i.kind = 'dma'
        else:
            i.dst = R[0]; i.src = set().union(*R[1:])
    else:
        raise ValueError("unknown op " + t)
    return i

def V(s): return {r for r in s if r[0] in ('v', 'a')}
def S(s): return {r for r in s if r[0] in ('s', 'vcc', 'exec')}

def required(p, c):
    need = 0
    if p.kind == 'valu':
        vd = V(p.dst)
        if c.kind == 'mfma' and vd & V(c.src): need = max(need, 2)
        if c.kind == 'valu':
            if p.op in TRANS and c.op not in TRANS and vd & (V(c.src)): need = max(need, 1)
            if p.op in TRANS and c.op in TRANS and vd & V(c.src): need = max(need, 1)
            if ('permlane' in c.op or 'dpp' in c.text or 'row_' in c.text or 'quad_perm' in c.text) and vd & V(c.src): need = max(need, 2)
            if (c.op.startswith('v_readlane') or c.op.startswith('v_readfirstlane')) and vd & V(c.src): need = max(need, 1)
            if ('sdwa' in p.op or 'op_sel' in p.text) and vd & (V(c.src) | V(c.dst)): need = max(need, 1)
            sd = S(p.dst)
            if sd & S(c.src):
                need = max(need, 2)
                if c.op.startswith('v_readlane') or c.op.startswith('v_writelane'): need = max(need, 4)
                if c.op.startswith('v_div_fmas'): need = max(need, 4)
            if ('exec', 0) in p.dst:
                if 'dpp' in c.text or 'row_' in c.text: need = max(need, 5)
                if c.op.startswith('v_read') or c.op.startswith('v_writelane') or 'permlane' in c.op: need = max(need, 4)
        if c.kind == 'mfma' and ('exec', 0) in p.dst: need = max(need, 4)
        if c.kind in ('vmem', 'dma') and S(p.dst) & S(c.src): need = max(need, 5)
        if c.kind in ('salu', 'smem') and S(p.dst) & S(c.src): need = max(need, 4)
    if p.kind == 'mfma':
        n = p.passes
        d = V(p.dst)
        if c.kind == 'mfma':
            if d & V(c.srcAB): need = max(need, {4: 8, 8: 12}[n])
            if d & V(c.srcC):
                if not (V(c.srcC) == d and c.passes == n): need = max(need, {4: 6, 8: 10}[n])
            if d & V(c.dst) and V(c.dst) != d: need = max(need, {4: 6, 8: 10}[n])
        elif c.kind in ('valu', 'vmem', 'ds', 'dma'):
            if d & (V(c.src) | V(c.dst)): need = max(need, {4: 8, 8: 12}[n])
            if c.kind == 'valu' and V(p.srcC) & V(c.dst): need = max(need, {4: 3, 8: 7}[n])
    if p.kind == 'vmem' and p.wide and p.storedata:
        if V(p.storedata) & V(c.dst): need = max(need, 2)
    if p.kind == 'salu' and ('m0', 0) in p.dst and c.kind == 'dma': need = max(need, 1)
    return need

class Asm:
    def __init__(self):
        self.out = []
        self.hist = []
        self.nops = 0
    def raw(self, s):
        self.out.append(s)
    def c(self, s):
        self.out.append("  ; " + s)
    def label(self, name, conservative=True):
        self.out.append(name + ":")
    def flush_hist(self):
        self.hist = []
    def e(self, text):
        ins = parse(text)
        need = 0; dist = 0
        for p in reversed(self.hist):
            r = required(p, ins)
            if r > dist: need = max(need, r - dist)
            dist += p.ws
            if dist >= 20: break
        while need > 0:
            k = min(need, 16)
            self.out.append("  s_nop %d" % (k - 1)); self.nops += k
            n = parse("s_nop %d" % (k - 1)); self.hist.append(n)
            need -= k
        self.out.append("  " + text)
        self.hist.append(ins)
        if len(self.hist) > 40: self.hist = self.hist[-30:]
    def m(self, multi):
        for l in multi.strip().split("\n"):
            l = l.strip()
            if not l or l.startswith(';'): continue
            self.e(l)
    def text(self):
        return "\n".join(self.out) + "\n"
```

```python
from asmlib import *
import struct
NAME = "gated_mix__softmax_full_mha__swiglu_ffn__prompt"
QF   = 0x0000000
KVF  = 0x0200000
XF   = 0x0600000
HF   = 0x0800000
OF   = 0x0E00000
BP   = 0x1000000
KMAX = 0x1400000
GG   = 0x1402000
CNT  = 0x1404000
WS_USED = 0x1600000
def f32(x):
    return "0x%08x" % struct.unpack("<I", struct.pack("<f", x))[0]

class VM:
    def __init__(self): self.q = []
    def issue(self, tag): self.q.append(tag)
    def wait_for(self, *tags):
        last = -1
        for i, t in enumerate(self.q):
            if t in tags: last = i
        n = len(self.q) - 1 - last
        self.q = self.q[last + 1:]
        return n

def srd(a, d, lo, nbytes, off=None):
    if off:
        a.e(f"s_add_u32 s{d}, s{lo}, {hex(off)}")
        a.e(f"s_addc_u32 s{d+1}, s{lo+1}, 0")
    else:
        a.e(f"s_mov_b32 s{d}, s{lo}")
        a.e(f"s_mov_b32 s{d+1}, s{lo+1}")
    a.e(f"s_mov_b32 s{d+2}, {hex(nbytes)}")
    a.e(f"s_mov_b32 s{d+3}, 0x20000")

def kernel_head(a, label):
    a.raw(f".globl {label}\n.p2align 8\n.type {label},@function\n{label}:")
    a.flush_hist()

def kernel_desc(label, vgpr, sgpr=96):
    acc = (vgpr + 3) // 4 * 4
    return f""".amdhsa_kernel {label}
  .amdhsa_next_free_vgpr {vgpr}
  .amdhsa_next_free_sgpr {sgpr}
  .amdhsa_accum_offset {acc}
  .amdhsa_group_segment_fixed_size 0
  .amdhsa_kernarg_size 88
  .amdhsa_user_sgpr_count 2
  .amdhsa_user_sgpr_kernarg_segment_ptr 1
  .amdhsa_system_sgpr_workgroup_id_x 1
.end_amdhsa_kernel
"""

def load_ptrs(a):
    a.e("s_load_dwordx16 s[16:31], s[0:1], 0")
    a.e("s_load_dwordx2 s[32:33], s[0:1], 64")
    a.e("s_load_dwordx2 s[34:35], s[0:1], 80")
P_AX, P_WQKV, P_WO, P_BX, P_WG, P_WU, P_WD, P_GW, P_OUT, P_WS = 16, 18, 20, 22, 24, 26, 28, 30, 32, 34

def dma(a, vm, tag, voff, srdreg, soff_val, lds_addr, stmp=15):
    a.e(f"s_mov_b32 m0, {lds_addr if isinstance(lds_addr, str) else hex(lds_addr)}")
    if isinstance(soff_val, str):
        a.e(f"s_nop 0")
        so = soff_val
    else:
        a.e(f"s_mov_b32 s{stmp}, {hex(soff_val)}")
        so = f"s{stmp}"
    a.e(f"buffer_load_dwordx4 v{voff}, s[{srdreg}:{srdreg+3}], {so} offen lds")
    vm.issue(tag)

def wave_max_dpp(a, v, half_only=True):
    for sh in (1, 2, 4, 8):
        a.e(f"v_max_f32_dpp v{v}, v{v}, v{v} row_shr:{sh} row_mask:0xf bank_mask:0xf bound_ctrl:0")
    a.e(f"v_max_f32_dpp v{v}, v{v}, v{v} row_bcast:15 row_mask:0xa bank_mask:0xf bound_ctrl:0")
    if not half_only:
        a.e(f"v_max_f32_dpp v{v}, v{v}, v{v} row_bcast:31 row_mask:0xc bank_mask:0xf bound_ctrl:0")

def wave_sum_dpp(a, v):
    for sh in (1, 2, 4, 8):
        a.e(f"v_add_f32_dpp v{v}, v{v}, v{v} row_shr:{sh} row_mask:0xf bank_mask:0xf bound_ctrl:0")
    a.e(f"v_add_f32_dpp v{v}, v{v}, v{v} row_bcast:15 row_mask:0xa bank_mask:0xf bound_ctrl:0")
    a.e(f"v_add_f32_dpp v{v}, v{v}, v{v} row_bcast:31 row_mask:0xc bank_mask:0xf bound_ctrl:0")

STAMP = 0x1480000
import os
STAMPS = os.environ.get('STAMPS', '0') == '1'
class Stamper:
    def __init__(self, a): self.a = a; self.n = 0
    def stamp(self):
        if not STAMPS: return
        r = 80 + 2 * self.n; self.n += 1
        self.a.e(f"s_memtime s[{r}:{r+1}]")
    def real(self, r):
        if not STAMPS: return
        self.a.e(f"s_memrealtime s[{r}:{r+1}]")
    def dump(self, sws, wgid_sgpr, wave_sgpr, kidx, vtmp=46, name='x'):
        if not STAMPS: return
        a = self.a
        a.e("s_waitcnt lgkmcnt(0)")
        a.e(f"s_lshl_b32 s78, s{wgid_sgpr}, 3")
        a.e(f"s_add_u32 s78, s78, s{wave_sgpr}")
        a.e(f"s_lshl_b32 s78, s78, 6")
        a.e(f"s_add_u32 s78, s78, {STAMP + kidx * 0x40000}")
        a.e(f"v_mov_b32 v{vtmp+1}, 0")
        for i in range(self.n):
            a.e(f"v_mov_b32 v{vtmp}, s{80 + 2 * i}")
            a.e(f"buffer_store_dword v{vtmp}, v{vtmp+1}, s[{sws}:{sws+3}], s78 offen offset:{4 * i}")
        for k, r in enumerate((76, 94)):
            a.e(f"v_mov_b32 v{vtmp}, s{r}")
            a.e(f"buffer_store_dword v{vtmp}, v{vtmp+1}, s[{sws}:{sws+3}], s78 offen offset:{56 + 4 * k}")
```

```python
from common import *
C_SCALE = 0.25 * 1.4426950408889634

def gen_k1(a, label):
    kernel_head(a, label)
    vm = VM()
    a.e("s_cmp_ge_u32 s2, 0x100")
    a.e(f"s_cbranch_scc1 {label}_end")
    st = Stamper(a); st.real(76); st.stamp()
    load_ptrs(a)
    a.e("v_and_b32 v1, 63, v0")
    a.e("v_lshrrev_b32 v2, 6, v0")
    a.e("v_readfirstlane_b32 s60, v2")
    a.e("v_and_b32 v3, 31, v1")
    a.e("v_lshrrev_b32 v4, 5, v1")
    a.e("s_and_b32 s3, s2, 7")
    a.e("s_lshr_b32 s4, s2, 3")
    a.e("s_and_b32 s5, s3, 3")
    a.e("s_lshl_b32 s5, s5, 2")
    a.e("s_and_b32 s6, s4, 3")
    a.e("s_add_u32 s61, s5, s6")
    a.e("s_lshr_b32 s5, s3, 2")
    a.e("s_lshl_b32 s5, s5, 3")
    a.e("s_lshr_b32 s6, s4, 2")
    a.e("s_add_u32 s62, s5, s6")
    a.e("s_lshl_b32 s63, s61, 2")
    a.e("s_add_u32 s63, s63, s60")
    a.e("s_waitcnt lgkmcnt(0)")
    SX, SW, SWS, SXB, SGW = 40, 44, 48, 52, 56
    srd(a, SX, P_AX, 2048 * 1024)
    srd(a, SW, P_WQKV, 512 * 3072)
    srd(a, SWS, P_WS, WS_USED)
    srd(a, SXB, P_AX, 2048 * 1024)
    srd(a, SGW, P_GW, 1024)
    a.e("s_lshl_b32 s64, s2, 3")
    a.e("s_lshl_b32 s65, s60, 1")
    a.e("s_add_u32 s64, s64, s65")
    a.e("s_lshr_b32 s65, s64, 5")
    a.e("s_and_b32 s66, s64, 31")
    a.e("s_lshl_b32 s65, s65, 15")
    a.e("s_lshl_b32 s66, s66, 5")
    a.e("s_add_u32 s65, s65, s66")
    a.e("v_lshlrev_b32 v5, 10, v3")
    a.e("v_lshlrev_b32 v6, 4, v4")
    a.e("v_add_u32 v5, v5, v6")
    a.e(f"buffer_load_dwordx4 v[8:11], v5, s[{SXB}:{SXB+3}], s65 offen"); vm.issue('prep')
    a.e(f"buffer_load_dwordx4 v[12:15], v5, s[{SXB}:{SXB+3}], s65 offen offset:32"); vm.issue('prep')
    a.e("v_lshlrev_b32 v7, 4, v1")
    a.e("s_lshl_b32 s67, s64, 10")
    a.e(f"buffer_load_dwordx4 v[16:19], v7, s[{SX}:{SX+3}], s67 offen"); vm.issue('prep')
    a.e(f"buffer_load_dwordx4 v[20:23], v7, s[{SX}:{SX+3}], s67 offen offset:1024"); vm.issue('prep')
    a.e(f"buffer_load_dwordx4 v[24:27], v7, s[{SGW}:{SGW+3}], 0 offen"); vm.issue('prep')
    a.e("v_lshrrev_b32 v28, 2, v1")
    a.e("s_lshl_b32 s68, s60, 4")
    a.e("v_add_u32 v28, s68, v28")
    a.e("v_mul_u32_u24 v28, 3072, v28")
    a.e("v_and_b32 v29, 3, v1")
    a.e("v_lshlrev_b32 v29, 4, v29")
    a.e("v_add_u32 v28, v28, v29")
    a.e("s_lshl_b32 s68, s62, 6")
    a.e("v_add_u32 v28, s68, v28")
    a.e("v_lshrrev_b32 v30, 3, v1")
    a.e("s_lshl_b32 s68, s63, 5")
    a.e("v_add_u32 v30, s68, v30")
    a.e("v_lshlrev_b32 v30, 10, v30")
    a.e("v_and_b32 v31, 7, v1")
    a.e("v_lshrrev_b32 v32, 4, v1")
    a.e("v_xor_b32 v33, v31, v32")
    a.e("v_xor_b32 v34, 4, v33")
    a.e("v_lshlrev_b32 v33, 4, v33")
    a.e("v_lshlrev_b32 v34, 4, v34")
    a.e("v_add_u32 v36, v30, v34")
    a.e("v_add_u32 v36, 0x2000, v36")
    a.e("v_add_u32 v35, v30, v33")
    XB = 98304
    a.e("s_lshl_b32 s69, s60, 14")
    a.e(f"s_add_u32 s69, s69, {XB}")
    a.e("s_lshl_b32 s70, s60, 10")
    def issue_W(s):
        for seg in range(3):
            a.e(f"s_add_u32 s71, s70, {seg * 32768 + s * 4096}")
            dma(a, vm, f'W{s}', 28, SW, s * 64 * 3072 + seg * 1024, "s71")
    def issue_X(s):
        for b in range(4):
            a.e(f"s_add_u32 s71, s69, {(s & 3) * 4096 + b * 1024}")
            dma(a, vm, f'X{s}', 35 + (b & 1), SX, s * 128 + (b >> 1) * 16384, "s71")
    for s in range(4):
        issue_W(s); issue_X(s)
    for s in range(4, 8):
        issue_W(s)
    a.e("v_lshrrev_b32 v37, 1, v3")
    a.e("v_and_b32 v37, 7, v37")
    a.e("v_lshlrev_b32 v38, 7, v3")
    a.e("v_add_u32 v38, s69, v38")
    for t in range(4):
        a.e(f"v_add_u32 v39, {2*t}, v4")
        a.e("v_xor_b32 v39, v39, v37")
        a.e("v_lshlrev_b32 v39, 4, v39")
        a.e(f"v_add_u32 v{40+t}, v38, v39")
    a.e("v_lshrrev_b32 v44, 1, v32")
    a.e("v_lshlrev_b32 v44, 3, v44")
    a.e("v_and_b32 v45, 15, v1")
    a.e("v_lshrrev_b32 v46, 2, v45")
    a.e("v_add_u32 v44, v44, v46")
    a.e("v_lshlrev_b32 v44, 6, v44")
    a.e("v_and_b32 v46, 1, v32")
    a.e("v_lshlrev_b32 v46, 5, v46")
    a.e("v_add_u32 v44, v44, v46")
    a.e("v_and_b32 v46, 3, v45")
    a.e("v_lshlrev_b32 v46, 3, v46")
    a.e("v_add_u32 v44, v44, v46")
    a.e("v_add_u32 v45, 0x10000, v44")
    a.e(f"s_waitcnt vmcnt({vm.wait_for('prep')})")
    a.e(f"s_add_u32 s72, s67, {XF}")
    a.e(f"buffer_store_dwordx4 v[8:11], v7, s[{SWS}:{SWS+3}], s72 offen"); vm.issue('st')
    a.e(f"buffer_store_dwordx4 v[12:15], v7, s[{SWS}:{SWS+3}], s72 offen offset:1024"); vm.issue('st')
    for (xr, acc) in ((16, 46), (20, 47)):
        for q in range(4):
            a.e(f"v_lshlrev_b32 v48, 16, v{xr+q}")
            a.e(f"v_and_b32 v49, 0xffff0000, v{xr+q}")
            a.e(f"v_lshlrev_b32 v50, 16, v{24+q}")
            a.e(f"v_and_b32 v51, 0xffff0000, v{24+q}")
            if q == 0: a.e(f"v_mul_f32 v{acc}, v48, v50")
            else: a.e(f"v_fmac_f32 v{acc}, v48, v50")
            a.e(f"v_fmac_f32 v{acc}, v49, v51")
    wave_sum_dpp(a, 46); wave_sum_dpp(a, 47)
    for r in (46, 47):
        a.e(f"v_mul_f32 v{r}, {f32(-1.4426950408889634)}, v{r}")
        a.e(f"v_exp_f32 v{r}, v{r}")
        a.e(f"v_add_f32 v{r}, 1.0, v{r}")
        a.e(f"v_rcp_f32 v{r}, v{r}")
    a.e("v_mov_b32 v48, v46")
    a.e("v_mov_b32 v49, v47")
    a.e("v_cmp_eq_u32 vcc, 63, v1")
    a.e("s_and_saveexec_b64 s[12:13], vcc")
    a.e("s_lshl_b32 s72, s64, 2")
    a.e(f"s_add_u32 s72, s72, {GG}")
    a.e("v_mov_b32 v50, 0")
    a.e(f"buffer_store_dwordx2 v[48:49], v50, s[{SWS}:{SWS+3}], s72 offen"); vm.issue('st')
    a.e("s_mov_b64 exec, s[12:13]")
    a.e("s_cmp_lg_u32 s2, 0")
    a.e(f"s_cbranch_scc1 {label}_nocnt")
    a.e("s_cmp_lg_u32 s60, 0")
    a.e(f"s_cbranch_scc1 {label}_nocnt")
    a.m(f"""
    v_mov_b32 v48, 0
    v_mov_b32 v49, 0
    v_mov_b32 v50, 0
    v_mov_b32 v51, 0
    s_mov_b32 s72, {CNT}
    buffer_store_dwordx4 v[48:51], v7, s[{SWS}:{SWS+3}], s72 offen
    s_waitcnt vmcnt(0)
    """)
    a.label(f"{label}_nocnt")
    ACC = 64
    for r in range(48): a.e(f"v_mov_b32 v{ACC + r}, 0")
    FR = 112
    def reads(kk):
        s, t = kk >> 2, kk & 3
        f = FR + 16 * (kk & 1)
        a.e(f"ds_read_b128 v[{f}:{f+3}], v{40+t} offset:{(s & 3) * 4096}")
        for seg in range(3):
            base, off = (44, seg * 32768) if seg < 2 else (45, 0)
            o = off + kk * 1024
            g = f + 4 + 4 * seg
            a.e(f"ds_read_b64_tr_b16 v[{g}:{g+1}], v{base} offset:{o}")
            a.e(f"ds_read_b64_tr_b16 v[{g+2}:{g+3}], v{base} offset:{o + 256}")
    def stage_sync(s):
        a.e(f"s_waitcnt vmcnt({vm.wait_for(f'W{s}', f'X{s}')})")
        a.e("s_barrier")
    st.stamp()
    stage_sync(0)
    st.stamp()
    reads(0)
    for kk in range(32):
        if kk + 1 < 32:
            if (kk + 1) % 4 == 0:
                stage_sync((kk + 1) // 4)
                if kk + 1 in (4, 16): st.stamp()
            reads(kk + 1)
            a.e("s_waitcnt lgkmcnt(7)")
        else:
            a.e("s_waitcnt lgkmcnt(0)")
        f = FR + 16 * (kk & 1)
        X = f"v[{f}:{f+3}]"
        Wf = [f"v[{f+4+4*s}:{f+7+4*s}]" for s in range(3)]
        A = [f"v[{ACC+16*s}:{ACC+16*s+15}]" for s in range(3)]
        a.e(f"v_mfma_f32_32x32x16_bf16 {A[0]}, {Wf[0]}, {X}, {A[0]}")
        a.e(f"v_mfma_f32_32x32x16_bf16 {A[1]}, {Wf[1]}, {X}, {A[1]}")
        a.e(f"v_mfma_f32_32x32x16_bf16 {A[2]}, {X}, {Wf[2]}, {A[2]}")
        if kk % 4 == 3 and kk // 4 + 4 < 8:
            issue_X(kk // 4 + 4)
    st.stamp()
    a.e(f"s_mov_b32 s72, {f32(C_SCALE)}")
    for r in range(16): a.e(f"v_mul_f32 v{ACC+r}, s72, v{ACC+r}")
    for p in range(8): a.e(f"v_cvt_pk_bf16_f32 v{FR+p}, v{ACC+2*p}, v{ACC+2*p+1}")
    a.e("s_lshl_b32 s72, s62, 7")
    a.e("s_add_u32 s72, s72, s63")
    a.e("s_lshl_b32 s73, s72, 10")
    a.e(f"s_add_u32 s73, s73, {QF}")
    a.e(f"buffer_store_dwordx4 v[{FR}:{FR+3}], v7, s[{SWS}:{SWS+3}], s73 offen")
    a.e("s_add_u32 s73, s73, 0x10000")
    a.e(f"buffer_store_dwordx4 v[{FR+4}:{FR+7}], v7, s[{SWS}:{SWS+3}], s73 offen")
    KA = ACC + 16
    for p in range(8): a.e(f"v_cvt_pk_bf16_f32 v{FR+8+p}, v{KA+2*p}, v{KA+2*p+1}")
    a.e("s_lshl_b32 s73, s72, 11")
    a.e(f"s_add_u32 s73, s73, {KVF}")
    a.e(f"buffer_store_dwordx4 v[{FR+8}:{FR+11}], v7, s[{SWS}:{SWS+3}], s73 offen")
    a.e("s_add_u32 s74, s73, 0x20000")
    a.e(f"buffer_store_dwordx4 v[{FR+12}:{FR+15}], v7, s[{SWS}:{SWS+3}], s74 offen")
    a.e(f"v_mul_f32 v46, v{KA}, v{KA}")
    a.e(f"v_mul_f32 v47, v{KA+8}, v{KA+8}")
    for r in range(1, 8):
        a.e(f"v_fmac_f32 v46, v{KA+r}, v{KA+r}")
        a.e(f"v_fmac_f32 v47, v{KA+8+r}, v{KA+8+r}")
    a.e("v_permlane32_swap_b32 v46, v47")
    a.e("v_add_f32 v46, v46, v47")
    wave_max_dpp(a, 46)
    a.e("v_cmp_eq_u32 vcc, 31, v3")
    a.e("s_and_saveexec_b64 s[12:13], vcc")
    a.e("v_lshlrev_b32 v47, 8, v4")
    a.e("s_lshl_b32 s74, s72, 2")
    a.e(f"s_add_u32 s74, s74, {KMAX}")
    a.e(f"buffer_store_dword v46, v47, s[{SWS}:{SWS+3}], s74 offen")
    a.e("s_mov_b64 exec, s[12:13]")
    VA = ACC + 32
    for p in range(8): a.e(f"v_cvt_pk_bf16_f32 v{FR+16+p}, v{VA+2*p}, v{VA+2*p+1}")
    a.e("v_lshrrev_b32 v46, 4, v1")
    a.e("v_and_b32 v46, 1, v46")
    a.e("v_lshlrev_b32 v46, 17, v46")
    a.e("v_lshlrev_b32 v47, 8, v4")
    a.e("v_add_u32 v46, v46, v47")
    a.e("v_and_b32 v47, 15, v1")
    a.e("v_lshlrev_b32 v47, 4, v47")
    a.e("v_add_u32 v46, v46, v47")
    a.e(f"buffer_store_dwordx4 v[{FR+16}:{FR+19}], v46, s[{SWS}:{SWS+3}], s73 offen offset:1024")
    a.e(f"buffer_store_dwordx4 v[{FR+20}:{FR+23}], v46, s[{SWS}:{SWS+3}], s73 offen offset:1536")
    a.e("s_waitcnt vmcnt(0)")
    st.stamp(); st.real(94)
    st.dump(SWS, 2, 60, 0, name=label)
    a.label(f"{label}_end")
    a.e("s_endpgm")
    return kernel_desc(label, 144)
```

```python
from common import *

def gen_attn(a, label, idreg=2, standalone=True, kidx=1, endlabel=None):
    vm = VM()
    L = label
    SWS = 48
    st = Stamper(a)
    if standalone:
        kernel_head(a, label)
        a.e(f"s_cmp_ge_u32 s2, 0x200")
        a.e(f"s_cbranch_scc1 {L}_end")
        st.real(76); st.stamp()
        load_ptrs(a)
    a.e("v_and_b32 v1, 63, v0")
    a.e("v_lshrrev_b32 v2, 6, v0")
    a.e("v_readfirstlane_b32 s60, v2")
    a.e("v_and_b32 v3, 31, v1")
    a.e("v_lshrrev_b32 v4, 5, v1")
    a.e(f"s_and_b32 s3, s{idreg}, 7")
    a.e("s_lshl_b32 s3, s3, 2")
    a.e(f"s_lshr_b32 s4, s{idreg}, 3")
    a.e("s_and_b32 s4, s4, 3")
    a.e("s_add_u32 s61, s3, s4")
    a.e(f"s_lshr_b32 s62, s{idreg}, 5")
    a.e("s_lshl_b32 s63, s62, 2")
    a.e("s_add_u32 s63, s63, s60")
    if standalone:
        a.e("s_waitcnt lgkmcnt(0)")
    srd(a, SWS, P_WS, WS_USED)
    a.e("v_lshlrev_b32 v5, 4, v1")
    a.e("s_lshl_b32 s64, s61, 6")
    a.e("s_add_u32 s65, s64, s63")
    a.e("s_lshl_b32 s65, s65, 10")
    a.e(f"s_add_u32 s65, s65, {QF}")
    a.e(f"buffer_load_dwordx4 v[8:11], v5, s[{SWS}:{SWS+3}], s65 offen"); vm.issue('q')
    a.e("v_lshlrev_b32 v6, 2, v1")
    a.e("s_lshl_b32 s65, s64, 2")
    a.e(f"s_add_u32 s65, s65, {KMAX}")
    a.e(f"buffer_load_dword v12, v6, s[{SWS}:{SWS+3}], s65 offen"); vm.issue('q')
    a.e("v_lshlrev_b32 v6, 2, v3")
    a.e("s_lshl_b32 s65, s63, 7")
    a.e(f"s_add_u32 s65, s65, {GG}")
    a.e(f"buffer_load_dword v13, v6, s[{SWS}:{SWS+3}], s65 offen"); vm.issue('q')
    a.e("s_add_u32 s66, s64, s60")
    a.e("s_lshl_b32 s66, s66, 11")
    a.e(f"s_add_u32 s66, s66, {KVF}")
    a.e("s_lshl_b32 s67, s60, 11")
    NS = 6
    def issue_chunk(c):
        for half in range(2):
            a.e(f"s_add_u32 m0, s67, {(c % NS) * 8192 + half * 1024}")
            a.e(f"s_add_u32 s68, s66, {c * 8192 + half * 1024}")
            a.e(f"buffer_load_dwordx4 v5, s[{SWS}:{SWS+3}], s68 offen lds"); vm.issue(f'c{c}')
    for c in range(5): issue_chunk(c)
    a.e("v_lshlrev_b32 v6, 8, v4")
    a.e("v_and_b32 v7, 15, v1")
    a.e("v_lshlrev_b32 v7, 4, v7")
    a.e("v_add_u32 v6, v6, v7")
    Q, C, S, O, P, KB, VB = 8, 16, [32, 48], 64, 80, [88, 92], [96, 104]
    for r in range(16): a.e(f"v_mov_b32 v{VB[0] + r}, 0x3f803f80")
    a.e("s_mov_b32 s70, 0xffff")
    a.e("s_mov_b32 s71, 0xffff")
    a.e(f"s_waitcnt vmcnt({vm.wait_for('q')})")
    for q in range(4):
        a.e(f"v_lshlrev_b32 v14, 16, v{Q+q}")
        a.e(f"v_and_b32 v15, 0xffff0000, v{Q+q}")
        if q == 0: a.e("v_mul_f32 v7, v14, v14")
        else: a.e("v_fmac_f32 v7, v14, v14")
        a.e("v_fmac_f32 v7, v15, v15")
    a.e("v_mov_b32 v14, v7")
    a.e("v_permlane32_swap_b32 v7, v14")
    a.e("v_add_f32 v7, v7, v14")
    wave_max_dpp(a, 12, half_only=False)
    a.e("v_readlane_b32 s69, v12, 63")
    a.e("v_mul_f32 v7, s69, v7")
    a.e("v_sqrt_f32 v7, v7")
    a.e(f"v_mul_f32 v7, {f32(-1.01)}, v7")
    a.e("s_mov_b32 s72, 0")
    a.label(f"{L}_retry")
    for r in range(16): a.e(f"v_mov_b32 v{C+r}, v7")
    for r in range(16): a.e(f"v_mov_b32 v{O+r}, 0")
    def rdK(T):
        c, t = T >> 2, T & 3
        k = KB[T & 1]
        a.e(f"ds_read_b128 v[{k}:{k+3}], v5 offset:{(c % NS) * 8192 + t * 2048}")
    def rdV(T):
        c, t = T >> 2, T & 3
        v = VB[T & 1]
        o = (c % NS) * 8192 + t * 2048 + 1024
        a.e("s_mov_b64 exec, s[70:71]")
        a.e(f"ds_read_b128 v[{v}:{v+3}], v6 offset:{o}")
        a.e(f"ds_read_b128 v[{v+4}:{v+7}], v6 offset:{o + 512}")
        a.e("s_mov_b64 exec, -1")
    def QK(T):
        k = KB[T & 1]; s = S[T & 1]
        a.e(f"v_mfma_f32_32x32x16_bf16 v[{s}:{s+15}], v[{k}:{k+3}], v[{Q}:{Q+3}], v[{C}:{C+15}]")
    st.stamp()
    a.e(f"s_waitcnt vmcnt({vm.wait_for('c0')})")
    a.e("s_barrier")
    st.stamp()
    rdK(0); rdK(1); rdV(0)
    a.e("s_waitcnt lgkmcnt(3)")
    QK(0)
    for T in range(64):
        c = T >> 2
        a.e("s_waitcnt lgkmcnt(0)")
        if T % 4 == 2 and c + 1 < 16:
            a.e(f"s_waitcnt vmcnt({vm.wait_for(f'c{c+1}')})")
            a.e("s_barrier")
            if c + 5 < 16: issue_chunk(c + 5)
        if T + 2 < 64: rdK(T + 2)
        if T + 1 < 64: rdV(T + 1)
        if T + 1 < 64: QK(T + 1)
        s = S[T & 1]; v = VB[T & 1]
        for i in range(8):
            a.e(f"v_exp_f32 v{s+2*i}, v{s+2*i}")
            a.e(f"v_exp_f32 v{s+2*i+1}, v{s+2*i+1}")
            if i >= 1:
                a.e(f"v_cvt_pk_bf16_f32 v{P+i-1}, v{s+2*i-2}, v{s+2*i-1}")
            if i == 5:
                a.e(f"v_mfma_f32_32x32x16_bf16 v[{O}:{O+15}], v[{v}:{v+3}], v[{P}:{P+3}], v[{O}:{O+15}]")
        a.e(f"v_cvt_pk_bf16_f32 v{P+7}, v{s+14}, v{s+15}")
        a.e(f"v_mfma_f32_32x32x16_bf16 v[{O}:{O+15}], v[{v+4}:{v+7}], v[{P+4}:{P+7}], v[{O}:{O+15}]")
        if T == 31: st.stamp()
    st.stamp()
    LSUM = O + 8
    a.e("s_cmp_lg_u32 s72, 0")
    a.e(f"s_cbranch_scc1 {L}_fin")
    a.e(f"v_mov_b32 v14, {f32(2.0 ** -40)}")
    a.e(f"v_cmp_nge_f32 vcc, v{LSUM}, v14")
    a.e("s_cmp_lg_u64 vcc, 0")
    a.e("s_cselect_b32 s73, 1, 0")
    a.e("v_mov_b32 v14, 0xc000")
    a.e("v_mov_b32 v15, 0")
    a.e("s_barrier")
    a.e("ds_write_b32 v14, v15")
    a.e("s_waitcnt lgkmcnt(0)")
    a.e("s_barrier")
    a.e("v_mov_b32 v15, s73")
    a.e("ds_or_b32 v14, v15")
    a.e("s_waitcnt lgkmcnt(0)")
    a.e("s_barrier")
    a.e("ds_read_b32 v15, v14")
    a.e("s_waitcnt lgkmcnt(0)")
    a.e("v_readfirstlane_b32 s73, v15")
    a.e("s_cmp_eq_u32 s73, 0")
    a.e(f"s_cbranch_scc1 {L}_fin")
    a.e("s_mov_b32 s72, 1")
    a.e(f"v_mov_b32 v7, {f32(-3.0e38)}")
    a.e("s_mov_b32 s73, 0")
    a.label(f"{L}_mx")
    a.e("s_barrier")
    a.e("s_mov_b32 m0, s67")
    a.e("s_add_u32 s68, s66, s73")
    a.e(f"buffer_load_dwordx4 v5, s[{SWS}:{SWS+3}], s68 offen lds")
    a.e("s_waitcnt vmcnt(0)")
    a.e("s_barrier")
    for t in range(4):
        a.e(f"ds_read_b128 v[{KB[0]}:{KB[0]+3}], v5 offset:{t * 2048}")
        a.e("s_waitcnt lgkmcnt(0)")
        a.e(f"v_mfma_f32_32x32x16_bf16 v[{S[0]}:{S[0]+15}], v[{KB[0]}:{KB[0]+3}], v[{Q}:{Q+3}], 0")
        for i in range(8):
            a.e(f"v_max3_f32 v7, v7, v{S[0]+2*i}, v{S[0]+2*i+1}")
    a.e("s_add_u32 s73, s73, 8192")
    a.e("s_cmp_lt_u32 s73, 131072")
    a.e(f"s_cbranch_scc1 {L}_mx")
    a.e("v_mov_b32 v14, v7")
    a.e("v_permlane32_swap_b32 v7, v14")
    a.e("v_max_f32 v7, v7, v14")
    a.e("v_sub_f32 v7, 0, v7")
    a.e("s_barrier")
    vm2 = VM()
    for c in range(5):
        for half in range(2):
            a.e(f"s_add_u32 m0, s67, {(c % NS) * 8192 + half * 1024}")
            a.e(f"s_add_u32 s68, s66, {c * 8192 + half * 1024}")
            a.e(f"buffer_load_dwordx4 v5, s[{SWS}:{SWS+3}], s68 offen lds")
    a.e(f"s_branch {L}_retry")
    a.flush_hist()
    a.label(f"{L}_fin")
    a.e("s_nop 7"); a.e("s_nop 7")
    a.e(f"v_rcp_f32 v14, v{LSUM}")
    a.e("v_mul_f32 v14, v14, v13")
    for r in range(8): a.e(f"v_mul_f32 v{O+r}, v{O+r}, v14")
    for p in range(4): a.e(f"v_cvt_pk_bf16_f32 v{P+p}, v{O+2*p}, v{O+2*p+1}")
    a.e("s_lshl_b32 s65, s63, 5")
    a.e("s_add_u32 s65, s65, s61")
    a.e("s_lshl_b32 s65, s65, 10")
    a.e(f"s_add_u32 s65, s65, {OF}")
    a.e(f"buffer_store_dwordx4 v[{P}:{P+3}], v5, s[{SWS}:{SWS+3}], s65 offen")
    if STAMPS:
        a.e("s_waitcnt vmcnt(0)")
        st.stamp(); st.real(94); st.dump(SWS, idreg, 60, kidx, vtmp=14, name=label)
    if standalone:
        a.label(f"{L}_end")
        a.e("s_endpgm")
        return kernel_desc(label, 112)
```

```python
from common import *
import os

def gen_attn2(a, L, idreg=2, st=None, kidx=1, prio=None):
    vm = VM()
    SWS = 48
    a.e("v_and_b32 v1, 63, v0")
    a.e("v_lshrrev_b32 v2, 6, v0")
    a.e("v_readfirstlane_b32 s60, v2")
    a.e("v_lshlrev_b32 v5, 4, v1")
    a.e(f"s_and_b32 s3, s{idreg}, 7")
    a.e("s_lshl_b32 s3, s3, 2")
    a.e(f"s_lshr_b32 s4, s{idreg}, 3")
    a.e("s_and_b32 s4, s4, 3")
    a.e("s_add_u32 s61, s3, s4")
    a.e(f"s_lshr_b32 s62, s{idreg}, 5")
    srd(a, SWS, P_WS, WS_USED)
    a.e("s_lshl_b32 s64, s61, 6")
    a.e("s_lshl_b32 s65, s60, 1")
    a.e("s_add_u32 s66, s64, s65")
    a.e("s_lshl_b32 s66, s66, 11")
    a.e(f"s_add_u32 s66, s66, {KVF}")
    a.e("s_lshl_b32 s67, s60, 12")
    NS, CH = 4, 8
    NCH = 64 // CH
    def issue_chunk(c):
        for i in range(4):
            a.e(f"s_add_u32 m0, s67, {(c % NS) * 16384 + i * 1024}")
            a.e(f"s_add_u32 s68, s66, {c * 16384 + i * 1024}")
            a.e(f"buffer_load_dwordx4 v5, s[{SWS}:{SWS+3}], s68 offen lds"); vm.issue(f'c{c}')
    issue_chunk(0)
    a.e("v_and_b32 v3, 31, v1")
    a.e("v_lshrrev_b32 v4, 5, v1")
    a.e("s_lshl_b32 s63, s62, 3")
    a.e("s_add_u32 s63, s63, s65")
    Q, C, S, O, P, KB, VB = [8, 12], [16, 32], [48, 64], [80, 96], [112, 120], [128, 132], [136, 144]
    a.e("s_add_u32 s65, s64, s63")
    a.e("s_lshl_b32 s65, s65, 10")
    a.e(f"s_add_u32 s65, s65, {QF}")
    a.e(f"buffer_load_dwordx4 v[{Q[0]}:{Q[0]+3}], v5, s[{SWS}:{SWS+3}], s65 offen"); vm.issue('q')
    a.e(f"buffer_load_dwordx4 v[{Q[1]}:{Q[1]+3}], v5, s[{SWS}:{SWS+3}], s65 offen offset:1024"); vm.issue('q')
    a.e("v_lshlrev_b32 v6, 2, v1")
    a.e("s_lshl_b32 s65, s64, 2")
    a.e(f"s_add_u32 s65, s65, {KMAX}")
    a.e(f"buffer_load_dword v152, v6, s[{SWS}:{SWS+3}], s65 offen"); vm.issue('q')
    a.e("v_lshlrev_b32 v6, 2, v3")
    a.e("s_lshl_b32 s65, s63, 7")
    a.e(f"s_add_u32 s65, s65, {GG}")
    a.e(f"buffer_load_dword v153, v6, s[{SWS}:{SWS+3}], s65 offen"); vm.issue('q')
    a.e(f"buffer_load_dword v154, v6, s[{SWS}:{SWS+3}], s65 offen offset:128"); vm.issue('q')
    for c in range(1, NS): issue_chunk(c)
    a.e("v_lshlrev_b32 v6, 8, v4")
    a.e("v_and_b32 v7, 15, v1")
    a.e("v_lshlrev_b32 v7, 4, v7")
    a.e("v_add_u32 v6, v6, v7")
    for r in range(16): a.e(f"v_mov_b32 v{VB[0] + r}, 0x3f803f80")
    for x in range(2):
        for r in range(16): a.e(f"v_mov_b32 v{O[x]+r}, 0")
    a.e("s_mov_b32 s70, 0xffff")
    a.e("s_mov_b32 s71, 0xffff")
    a.e(f"s_waitcnt vmcnt({vm.wait_for('q')})")
    wave_max_dpp(a, 152, half_only=False)
    a.e("v_readlane_b32 s69, v152, 63")
    for x in range(2):
        t = 155 + x
        for q in range(4):
            a.e(f"v_lshlrev_b32 v157, 16, v{Q[x]+q}")
            a.e(f"v_and_b32 v158, 0xffff0000, v{Q[x]+q}")
            if q == 0: a.e(f"v_mul_f32 v{t}, v157, v157")
            else: a.e(f"v_fmac_f32 v{t}, v157, v157")
            a.e(f"v_fmac_f32 v{t}, v158, v158")
        a.e(f"v_mov_b32 v157, v{t}")
        a.e(f"v_permlane32_swap_b32 v{t}, v157")
        a.e(f"v_add_f32 v{t}, v{t}, v157")
        a.e(f"v_mul_f32 v{t}, s69, v{t}")
        a.e(f"v_sqrt_f32 v{t}, v{t}")
        a.e(f"v_mul_f32 v{t}, {f32(-1.01)}, v{t}")
        for r in range(16): a.e(f"v_mov_b32 v{C[x]+r}, v{t}")
    def off(T):
        c, t = T // CH, T % CH
        return (c % NS) * 16384 + t * 2048
    X = os.environ.get('XP', '')
    def rdK(T):
        if 'nods' in X and T > 1: return
        k = KB[T & 1]
        a.e(f"ds_read_b128 v[{k}:{k+3}], v5 offset:{off(T)}")
    def rdV(T):
        v = VB[T & 1]; o = off(T) + 1024
        if 'nods' in X and T > 1: return
        a.e("s_mov_b64 exec, s[70:71]")
        a.e(f"ds_read_b128 v[{v}:{v+3}], v6 offset:{o}")
        a.e(f"ds_read_b128 v[{v+4}:{v+7}], v6 offset:{o + 512}")
        a.e("s_mov_b64 exec, -1")
    def QK(x, T):
        k = KB[T & 1]; s = S[x]
        if 'noqk' in X and T > 1: return
        a.e(f"v_mfma_f32_32x32x16_bf16 v[{s}:{s+15}], v[{k}:{k+3}], v[{Q[x]}:{Q[x]+3}], v[{C[x]}:{C[x]+15}]")
    def PV(x, T, half):
        v = VB[T & 1] + 4 * half; p = P[x] + 4 * half; o = O[x]
        if 'nopv' in X and T > 1: return
        a.e(f"v_mfma_f32_32x32x16_bf16 v[{o}:{o+15}], v[{v}:{v+3}], v[{p}:{p+3}], v[{o}:{o+15}]")
    if prio is not None: a.e(f"s_setprio {prio}")
    if st: st.stamp()
    a.e(f"s_waitcnt vmcnt({vm.wait_for('c0')})")
    a.e("s_barrier")
    if st: st.stamp()
    rdK(0); rdV(0)
    a.e("s_waitcnt lgkmcnt(2)")
    QK(0, 0)
    def phase(x, T):
        s = S[x]; p = P[x]; y = 1 - x
        def E(i): a.e(f"v_exp_f32 v{s+i}, v{s+i}")
        def Cv(i):
            if 'nocv' in X and T > 1: return
            a.e(f"v_cvt_pk_bf16_f32 v{p+i}, v{s+2*i}, v{s+2*i+1}")
        E(0); E(1)
        if x == 0:
            if T > 0: PV(1, T - 1, 1)
        else:
            PV(0, T, 1)
        E(2); E(3); Cv(0)
        if x == 0:
            if T % CH == CH - 1 and T + 1 < 64:
                c1 = (T + 1) // CH
                a.e(f"s_waitcnt vmcnt({vm.wait_for(f'c{c1}')})")
                a.e("s_barrier")
            if T + 1 < 64: rdK(T + 1)
        E(4); E(5); Cv(1)
        if x == 0:
            QK(1, T)
        else:
            if T + 1 < 64:
                a.e("s_waitcnt lgkmcnt(0)")
                QK(0, T + 1)
        E(6); E(7); Cv(2)
        if x == 0:
            if T + 1 < 64: rdV(T + 1)
            if T % CH == CH - 1 and T + 1 < 64:
                c1 = (T + 1) // CH
                if c1 + NS - 1 < NCH: issue_chunk(c1 + NS - 1)
        E(8); E(9); Cv(3); E(10); E(11)
        PV(x, T, 0)
        Cv(4); E(12); E(13); Cv(5); E(14); E(15); Cv(6); Cv(7)
    a.e("s_waitcnt lgkmcnt(0)")
    for T in range(64):
        phase(0, T); phase(1, T)
        if T == 31 and st: st.stamp()
    PV(1, 63, 1)
    if st: st.stamp()
    if prio is not None: a.e("s_setprio 0")
    a.e("s_nop 7"); a.e("s_nop 7")
    for x in range(2):
        LS = O[x] + 8
        a.e(f"v_mov_b32 v157, {f32(2.0 ** -40)}")
        a.e(f"v_cmp_nge_f32 vcc, v{LS}, v157")
        a.e("s_cmp_eq_u64 vcc, 0")
        a.e(f"s_cbranch_scc1 {L}_ok{x}")
        s = S[0]; k = KB[0]; v = VB[0]; p = P[0]
        a.e(f"s_lshl_b32 s72, s64, 11")
        a.e(f"s_add_u32 s72, s72, {KVF}")
        a.e(f"v_mov_b32 v157, {f32(-3.0e38)}")
        a.e("s_mov_b32 s73, 0")
        a.label(f"{L}_mx{x}")
        a.e("s_add_u32 s68, s72, s73")
        a.e(f"buffer_load_dwordx4 v[{k}:{k+3}], v5, s[{SWS}:{SWS+3}], s68 offen")
        a.e("s_waitcnt vmcnt(0)")
        a.e(f"v_mfma_f32_32x32x16_bf16 v[{s}:{s+15}], v[{k}:{k+3}], v[{Q[x]}:{Q[x]+3}], 0")
        for i in range(8): a.e(f"v_max3_f32 v157, v157, v{s+2*i}, v{s+2*i+1}")
        a.e("s_add_u32 s73, s73, 2048")
        a.e("s_cmp_lt_u32 s73, 131072")
        a.e(f"s_cbranch_scc1 {L}_mx{x}")
        a.e("v_mov_b32 v158, v157")
        a.e("v_permlane32_swap_b32 v157, v158")
        a.e("v_max_f32 v157, v157, v158")
        a.e("v_sub_f32 v157, 0, v157")
        for r in range(16): a.e(f"v_mov_b32 v{C[x]+r}, v157")
        for r in range(16): a.e(f"v_mov_b32 v{O[x]+r}, 0")
        a.e("s_mov_b32 s73, 0")
        a.label(f"{L}_sl{x}")
        a.e("s_add_u32 s68, s72, s73")
        a.e(f"buffer_load_dwordx4 v[{k}:{k+3}], v5, s[{SWS}:{SWS+3}], s68 offen")
        a.e("s_mov_b64 exec, s[70:71]")
        a.e(f"buffer_load_dwordx4 v[{v}:{v+3}], v6, s[{SWS}:{SWS+3}], s68 offen offset:1024")
        a.e(f"buffer_load_dwordx4 v[{v+4}:{v+7}], v6, s[{SWS}:{SWS+3}], s68 offen offset:1536")
        a.e("s_mov_b64 exec, -1")
        a.e("s_waitcnt vmcnt(0)")
        a.e(f"v_mfma_f32_32x32x16_bf16 v[{s}:{s+15}], v[{k}:{k+3}], v[{Q[x]}:{Q[x]+3}], v[{C[x]}:{C[x]+15}]")
        for i in range(16): a.e(f"v_exp_f32 v{s+i}, v{s+i}")
        for i in range(8): a.e(f"v_cvt_pk_bf16_f32 v{p+i}, v{s+2*i}, v{s+2*i+1}")
        a.e(f"v_mfma_f32_32x32x16_bf16 v[{O[x]}:{O[x]+15}], v[{v}:{v+3}], v[{p}:{p+3}], v[{O[x]}:{O[x]+15}]")
        a.e(f"v_mfma_f32_32x32x16_bf16 v[{O[x]}:{O[x]+15}], v[{v+4}:{v+7}], v[{p+4}:{p+7}], v[{O[x]}:{O[x]+15}]")
        a.e("s_add_u32 s73, s73, 2048")
        a.e("s_cmp_lt_u32 s73, 131072")
        a.e("s_nop 7")
        a.e(f"s_cbranch_scc1 {L}_sl{x}")
        a.e("s_nop 7"); a.e("s_nop 7")
        a.label(f"{L}_ok{x}")
        a.flush_hist()
    for x in range(2):
        LS = O[x] + 8
        a.e(f"v_rcp_f32 v157, v{LS}")
        a.e(f"v_mul_f32 v157, v157, v{153+x}")
        for r in range(8): a.e(f"v_mul_f32 v{O[x]+r}, v{O[x]+r}, v157")
        for p_ in range(4): a.e(f"v_cvt_pk_bf16_f32 v{P[x]+p_}, v{O[x]+2*p_}, v{O[x]+2*p_+1}")
        if x == 0:
            a.e("s_lshl_b32 s65, s63, 5")
            a.e("s_add_u32 s65, s65, s61")
            a.e("s_lshl_b32 s65, s65, 10")
            a.e(f"s_add_u32 s65, s65, {OF}")
        else:
            a.e("s_add_u32 s65, s65, 0x8000")
        a.e(f"buffer_store_dwordx4 v[{P[x]}:{P[x]+3}], v5, s[{SWS}:{SWS+3}], s65 offen")

def gen_attn2_kernel(a, label):
    kernel_head(a, label)
    a.e("s_cmp_ge_u32 s2, 0x100")
    a.e(f"s_cbranch_scc1 {label}_end")
    st = Stamper(a); st.real(76); st.stamp()
    load_ptrs(a)
    a.e("s_waitcnt lgkmcnt(0)")
    gen_attn2(a, label, 2, st)
    if STAMPS:
        a.e("s_waitcnt vmcnt(0)")
        st.stamp(); st.real(94); st.dump(48, 2, 60, 1, vtmp=20, name=label)
    a.label(f"{label}_end")
    a.e("s_endpgm")
    return kernel_desc(label, 160)
```

```python
from common import *
NLOG2E = -1.4426950408889634

def lane_setup(a):
    a.e("v_and_b32 v1, 63, v0")
    a.e("v_lshrrev_b32 v2, 6, v0")
    a.e("v_readfirstlane_b32 s60, v2")
    a.e("v_and_b32 v3, 31, v1")
    a.e("v_lshrrev_b32 v4, 5, v1")
    a.e("v_lshlrev_b32 v5, 4, v1")

def gen_up_body(a, L, nt, st=None, sc=""):
    vm = VM()
    SW, SWS = 40, 48
    RB = nt * 64
    BLK = 16 * RB
    STG = 4 * BLK
    NSTG = 6
    lpr = RB // 16
    VD = 8
    for i in range(nt):
        a.e(f"v_add_u32 v6, {64 * i}, v1")
        if lpr == 8:
            a.e("v_lshrrev_b32 v7, 3, v6")
        else:
            a.e("v_mul_u32_u24 v7, 43691, v6")
            a.e("v_lshrrev_b32 v7, 19, v7")
        a.e(f"v_mul_u32_u24 v11, {lpr}, v7")
        a.e("v_sub_u32 v11, v6, v11")
        a.e("v_mul_u32_u24 v7, 2752, v7")
        a.e("v_lshlrev_b32 v11, 4, v11")
        a.e(f"v_add_u32 v{VD + i}, v7, v11")
    a.e("s_lshr_b32 s64, s60, 1")
    a.e(f"s_mul_i32 s64, s64, {16 * 2752}")
    a.e("s_lshl_b32 s65, s62, 6")
    a.e("s_add_u32 s64, s64, s65")
    a.e(f"s_mul_i32 s65, s60, {BLK}")
    def issue_W(s):
        for i in range(nt):
            a.e(f"s_add_u32 m0, s65, {(s % NSTG) * STG + i * 1024}")
            a.e(f"s_add_u32 s66, s64, {s * 32 * 2752}")
            a.e(f"buffer_load_dwordx4 v{VD + i}, s[{SW}:{SW+3}], s66 offen lds"); vm.issue(f'W{s}')
    a.e("s_lshl_b32 s63, s61, 2")
    a.e("s_add_u32 s63, s63, s60")
    a.e("s_lshl_b32 s67, s63, 15")
    a.e(f"s_add_u32 s67, s67, {XF}")
    XR, NX = 112, 8
    def issue_X(kk):
        r = XR + 4 * (kk % NX)
        a.e(f"s_add_u32 s66, s67, {kk * 1024}")
        a.e(f"buffer_load_dwordx4 v[{r}:{r+3}], v5, s[{SWS}:{SWS+3}], s66 offen"); vm.issue(f'X{kk}')
    a.e("v_lshlrev_b32 v6, 2, v3")
    a.e("s_lshl_b32 s66, s63, 7")
    a.e(f"s_add_u32 s66, s66, {GG}")
    a.e(f"buffer_load_dword v13, v6, s[{SWS}:{SWS+3}], s66 offen"); vm.issue('g')
    for s in range(NSTG - 1):
        issue_W(s); issue_X(2 * s); issue_X(2 * s + 1)
        if 2 * s + 2 >= NX: pass
        if s == 3: break
    issue_W(4)
    a.e("v_lshrrev_b32 v6, 4, v1")
    a.e("v_lshrrev_b32 v7, 1, v6")
    a.e("v_lshlrev_b32 v7, 3, v7")
    a.e("v_and_b32 v11, 15, v1")
    a.e("v_lshrrev_b32 v12, 2, v11")
    a.e("v_add_u32 v7, v7, v12")
    a.e(f"v_mul_u32_u24 v7, {RB}, v7")
    a.e("v_and_b32 v12, 1, v6")
    a.e("v_lshlrev_b32 v12, 5, v12")
    a.e("v_add_u32 v7, v7, v12")
    a.e("v_and_b32 v12, 3, v11")
    a.e("v_lshlrev_b32 v12, 3, v12")
    a.e("v_add_u32 v7, v7, v12")
    a.e("v_add_u32 v12, 0x8000, v7")
    ACC = 16
    for r in range(32 * nt): a.e(f"v_mov_b32 v{ACC + r}, 0")
    WF = 144
    def reads(kk):
        s, k2 = kk >> 1, kk & 1
        f = WF + 24 * (kk & 1)
        for mat in range(2):
            for t in range(nt):
                o = (s % NSTG) * STG + (k2 * 2 + mat) * BLK + t * 64
                base = 7
                if o + 4 * RB > 65535: base, o = 12, o - 32768
                g = f + (mat * nt + t) * 4
                a.e(f"ds_read_b64_tr_b16 v[{g}:{g+1}], v{base} offset:{o}")
                a.e(f"ds_read_b64_tr_b16 v[{g+2}:{g+3}], v{base} offset:{o + 4 * RB}")
    def stage_sync(s):
        a.e(f"s_waitcnt vmcnt({vm.wait_for(f'W{s}')})")
        a.e("s_barrier")
    if st: st.stamp()
    stage_sync(0)
    reads(0)
    for kk in range(32):
        if kk + 1 < 32:
            if (kk + 1) % 2 == 0:
                s = (kk + 1) // 2
                stage_sync(s)
                if s + 4 < 16: issue_W(s + 4)
            reads(kk + 1)
            nrd = 4 * nt
            a.e(f"s_waitcnt lgkmcnt({nrd})")
        else:
            a.e("s_waitcnt lgkmcnt(0)")
        n = vm.wait_for(f'X{kk}')
        a.e(f"s_waitcnt vmcnt({n})")
        f = WF + 24 * (kk & 1)
        x = XR + 4 * (kk % NX)
        for mat in range(2):
            for t in range(nt):
                g = f + (mat * nt + t) * 4
                A = ACC + (mat * nt + t) * 16
                a.e(f"v_mfma_f32_32x32x16_bf16 v[{A}:{A+15}], v[{g}:{g+3}], v[{x}:{x+3}], v[{A}:{A+15}]")
        if kk + NX < 32: issue_X(kk + NX)
    if st: st.stamp()
    a.e("v_sub_f32 v13, 1.0, v13")
    T = XR
    for t in range(nt):
        G = ACC + t * 16; U = ACC + (nt + t) * 16
        for r in range(16): a.e(f"v_mul_f32 v{T + r}, {f32(NLOG2E)}, v{G + r}")
        for r in range(16): a.e(f"v_exp_f32 v{T + r}, v{T + r}")
        for r in range(16): a.e(f"v_mul_f32 v{G + r}, v{G + r}, v{U + r}")
        for r in range(16): a.e(f"v_add_f32 v{T + r}, 1.0, v{T + r}")
        for r in range(16): a.e(f"v_rcp_f32 v{T + r}, v{T + r}")
        for r in range(16): a.e(f"v_mul_f32 v{G + r}, v{G + r}, v13")
        for r in range(16): a.e(f"v_mul_f32 v{G + r}, v{G + r}, v{T + r}")
        for p in range(8): a.e(f"v_cvt_pk_bf16_f32 v{U + p}, v{G + 2 * p}, v{G + 2 * p + 1}")
        if t == 0:
            a.e("s_mul_i32 s66, s63, 86")
            a.e("s_lshl_b32 s68, s62, 1")
            a.e("s_add_u32 s66, s66, s68")
            a.e("s_lshl_b32 s66, s66, 10")
            a.e(f"s_add_u32 s66, s66, {HF}")
        else:
            a.e("s_add_u32 s66, s66, 2048")
        a.e(f"buffer_store_dwordx4 v[{U}:{U+3}], v5, s[{SWS}:{SWS+3}], s66 offen{sc}")
        a.e(f"buffer_store_dwordx4 v[{U+4}:{U+7}], v5, s[{SWS}:{SWS+3}], s66 offen offset:1024{sc}")

def gen_up(a, L, idreg, st=None, sc=""):
    lane_setup(a)
    a.e(f"s_and_b32 s61, s{idreg}, 7")
    a.e("s_lshl_b32 s61, s61, 1")
    a.e(f"s_lshr_b32 s62, s{idreg}, 3")
    a.e("s_and_b32 s63, s62, 1")
    a.e("s_add_u32 s61, s61, s63")
    a.e(f"s_lshr_b32 s59, s{idreg}, 4")
    a.e("s_bitcmp1_b32 s60, 0")
    a.e(f"s_cselect_b32 s40, s{P_WU}, s{P_WG}")
    a.e(f"s_cselect_b32 s41, s{P_WU+1}, s{P_WG+1}")
    a.e(f"s_mov_b32 s42, {512 * 2752}")
    a.e("s_mov_b32 s43, 0x20000")
    srd(a, 48, P_WS, WS_USED)
    a.e("s_cmp_lt_u32 s59, 11")
    a.e(f"s_cbranch_scc0 {L}_up2")
    a.e("s_mul_i32 s62, s59, 3")
    gen_up_body(a, L + "_u3", 3, st, sc)
    a.e(f"s_branch {L}_updone")
    a.flush_hist()
    a.label(f"{L}_up2")
    a.e("s_lshl_b32 s62, s59, 1")
    a.e("s_add_u32 s62, s62, 11")
    gen_up_body(a, L + "_u2", 2, None, sc)
    a.label(f"{L}_updone")
    a.flush_hist()

def gen_up_kernel(a, label):
    kernel_head(a, label)
    a.e("s_cmp_ge_u32 s2, 0x100")
    a.e(f"s_cbranch_scc1 {label}_end")
    st = Stamper(a); st.real(76); st.stamp()
    load_ptrs(a)
    a.e("s_waitcnt lgkmcnt(0)")
    gen_up(a, label, 2, st)
    if STAMPS:
        a.e("s_waitcnt vmcnt(0)")
        st.stamp(); st.real(94); st.dump(48, 2, 60, 2, vtmp=14, name=label)
    a.label(f"{label}_end")
    a.e("s_endpgm")
    return kernel_desc(label, 192)

def gen_splitk(a, L, mode, idreg, st=None, sc_ld="", sc_st=""):
    vm = VM()
    SW, SWS, SA, SO = 40, 48, 44, 52
    down = mode == 'down'
    nfb = 86 if down else 32
    nk = 22 if down else 8
    a.e(f"s_and_b32 s61, s{idreg}, 7")
    a.e("s_lshl_b32 s61, s61, 2")
    a.e(f"s_lshr_b32 s62, s{idreg}, 3")
    a.e("s_and_b32 s62, s62, 3")
    a.e("s_add_u32 s61, s61, s62")
    a.e(f"s_lshr_b32 s62, s{idreg}, 5")
    srd(a, SWS, P_WS, WS_USED)
    if down:
        srd(a, SW, P_WD, 1376 * 1024)
        a.e("s_mul_i32 s63, s60, 22")
        a.e("s_cmp_eq_u32 s60, 3")
        a.e("s_cselect_b32 s64, 1, 0")
        a.e("s_sub_u32 s63, s63, s64")
    else:
        srd(a, SW, P_WO, 512 * 1024)
        srd(a, SO, P_OUT, 2048 * 1024)
        a.e("s_lshl_b32 s63, s60, 3")
    return_ = None
    a.e(f"s_mul_i32 s64, s61, {2 * nfb}")
    a.e("s_add_u32 s64, s64, s63")
    a.e("s_lshl_b32 s64, s64, 10")
    a.e(f"s_add_u32 s64, s64, {HF if down else OF}")
    a.e(f"s_add_u32 s65, s64, {nfb * 1024}")
    a.e("s_lshl_b32 s66, s63, 14")
    a.e("s_lshl_b32 s67, s62, 7")
    a.e("s_add_u32 s66, s66, s67")
    a.e("s_lshl_b32 s67, s60, 14")
    a.e("v_lshrrev_b32 v6, 3, v1")
    a.e("v_and_b32 v7, 7, v1")
    a.e("v_lshrrev_b32 v8, 1, v6")
    a.e("v_and_b32 v8, 1, v8")
    a.e("v_lshlrev_b32 v8, 2, v8")
    a.e("v_xor_b32 v7, v7, v8")
    a.e("v_lshlrev_b32 v7, 4, v7")
    a.e("v_lshlrev_b32 v6, 10, v6")
    a.e("v_add_u32 v8, v6, v7")
    ACC, HR, WF, BPR = 16, 80, 144, 160
    NR = 8
    def kclamp(kk):
        return kk
    def issue(kk):
        sl = kk % NR
        last_opt = down and kk == nk - 1
        if last_opt:
            a.e("s_cmp_ge_u32 s60, 2")
            a.e(f"s_cselect_b32 s69, {(kk - 1)}, {kk}")
            a.e("s_lshl_b32 s70, s69, 10")
            a.e("s_lshl_b32 s69, s69, 14")
        for i in range(2):
            a.e(f"s_add_u32 m0, s67, {sl * 2048 + i * 1024}")
            if last_opt:
                a.e(f"s_add_u32 s68, s66, s69")
                if i: a.e("s_add_u32 s68, s68, 8192")
            else:
                a.e(f"s_add_u32 s68, s66, {kk * 16384 + i * 8192}")
            a.e(f"buffer_load_dwordx4 v8, s[{SW}:{SW+3}], s68 offen lds"); vm.issue(f'k{kk}')
        for j, sb in enumerate((64, 65)):
            r = HR + sl * 8 + j * 4
            if last_opt: a.e(f"s_add_u32 s68, s{sb}, s70")
            else: a.e(f"s_add_u32 s68, s{sb}, {kk * 1024}")
            a.e(f"buffer_load_dwordx4 v[{r}:{r+3}], v5, s[{SWS}:{SWS+3}], s68 offen{sc_ld}"); vm.issue(f'k{kk}')
    if not down:
        a.e("s_and_b32 s71, s60, 1")
        a.e("s_lshr_b32 s72, s60, 1")
        a.e("s_lshl_b32 s73, s61, 1")
        a.e("s_add_u32 s73, s73, s71")
        a.e("s_lshl_b32 s74, s62, 1")
        a.e("s_add_u32 s74, s74, s72")
        a.e("s_lshl_b32 s75, s73, 4")
        a.e("s_add_u32 s75, s75, s74")
        a.e("s_lshl_b32 s75, s75, 12")
        a.e(f"s_add_u32 s75, s75, {BP}")
    for kk in range(min(NR, nk)): issue(kk)
    if not down:
        for q in range(4):
            a.e(f"buffer_load_dwordx4 v[{BPR+4*q}:{BPR+4*q+3}], v5, s[{SWS}:{SWS+3}], s75 offen offset:{1024*q}"); vm.issue('bp')
    a.e("v_lshrrev_b32 v6, 4, v1")
    a.e("v_and_b32 v7, 15, v1")
    a.e("v_lshrrev_b32 v9, 2, v7")
    a.e("v_and_b32 v10, 3, v7")
    a.e("v_lshrrev_b32 v11, 1, v6")
    a.e("v_lshlrev_b32 v11, 2, v11")
    a.e("v_add_u32 v11, v11, v9")
    a.e("v_lshlrev_b32 v11, 7, v11")
    a.e("v_and_b32 v12, 1, v10")
    a.e("v_lshlrev_b32 v12, 5, v12")
    a.e("v_add_u32 v11, v11, v12")
    a.e("v_and_b32 v12, 1, v6")
    a.e("v_lshlrev_b32 v12, 4, v12")
    a.e("v_add_u32 v11, v11, v12")
    a.e("v_lshrrev_b32 v12, 1, v10")
    a.e("v_lshlrev_b32 v12, 3, v12")
    a.e("v_add_u32 v11, v11, v12")
    a.e("v_lshrrev_b32 v12, 1, v9")
    a.e("v_lshlrev_b32 v12, 6, v12")
    a.e("v_add_u32 v11, v11, v12")
    a.e("v_add_u32 v11, s67, v11")
    a.e("v_xor_b32 v12, 64, v11")
    for r in range(64): a.e(f"v_mov_b32 v{ACC + r}, 0")
    def reads(kk):
        sl = kk % NR
        f = WF + 8 * (kk & 1)
        for t in range(2):
            a.e(f"ds_read_b64_tr_b16 v[{f+4*t}:{f+4*t+1}], v{11+t} offset:{sl * 2048}")
            a.e(f"ds_read_b64_tr_b16 v[{f+4*t+2}:{f+4*t+3}], v{11+t} offset:{sl * 2048 + 1024}")
    if st: st.stamp()
    a.e(f"s_waitcnt vmcnt({vm.wait_for('k0')})")
    if st: st.stamp()
    reads(0)
    for kk in range(nk):
        if kk + 1 < nk:
            a.e(f"s_waitcnt vmcnt({vm.wait_for(f'k{kk+1}')})")
            reads(kk + 1)
            a.e("s_waitcnt lgkmcnt(4)")
        else:
            a.e("s_waitcnt lgkmcnt(0)")
        f = WF + 8 * (kk & 1)
        h = HR + (kk % NR) * 8
        opt = down and kk == nk - 1
        if opt:
            a.e("s_cmp_ge_u32 s60, 2")
            a.e(f"s_cbranch_scc1 {L}_skiplast")
        for t in range(2):
            for j in range(2):
                A = ACC + (t * 2 + j) * 16
                a.e(f"v_mfma_f32_32x32x16_bf16 v[{A}:{A+15}], v[{f+4*t}:{f+4*t+3}], v[{h+4*j}:{h+4*j+3}], v[{A}:{A+15}]")
        if opt:
            a.label(f"{L}_skiplast")
        if kk + NR < nk: issue(kk + NR)
    if st: st.stamp()
    a.e("s_nop 7"); a.e("s_nop 7")
    a.e("s_barrier")
    a.e("s_lshl_b32 s68, s60, 12")
    a.e("v_add_u32 v6, s68, v5")
    for i in range(4):
        for q in range(4):
            r = ACC + i * 16 + q * 4
            a.e(f"ds_write_b128 v6, v[{r}:{r+3}] offset:{i * 16384 + q * 1024}")
    a.e("s_waitcnt lgkmcnt(0)")
    a.e("s_barrier")
    a.e("s_lshl_b32 s68, s60, 14")
    a.e("v_add_u32 v6, s68, v5")
    for s in range(4):
        for q in range(4):
            r = ACC + s * 16 + q * 4
            a.e(f"ds_read_b128 v[{r}:{r+3}], v6 offset:{s * 4096 + q * 1024}")
    a.e("s_waitcnt lgkmcnt(8)")
    for r in range(16): a.e(f"v_add_f32 v{ACC + r}, v{ACC + r}, v{ACC + 16 + r}")
    a.e("s_waitcnt lgkmcnt(0)")
    for r in range(16): a.e(f"v_add_f32 v{ACC + 32 + r}, v{ACC + 32 + r}, v{ACC + 48 + r}")
    for r in range(16): a.e(f"v_add_f32 v{ACC + r}, v{ACC + r}, v{ACC + 32 + r}")
    if down:
        a.e("s_and_b32 s71, s60, 1")
        a.e("s_lshr_b32 s72, s60, 1")
        a.e("s_lshl_b32 s73, s61, 1")
        a.e("s_add_u32 s73, s73, s71")
        a.e("s_lshl_b32 s74, s62, 1")
        a.e("s_add_u32 s74, s74, s72")
        a.e("s_lshl_b32 s75, s73, 4")
        a.e("s_add_u32 s75, s75, s74")
        a.e("s_lshl_b32 s75, s75, 12")
        a.e(f"s_add_u32 s75, s75, {BP}")
        for q in range(4):
            a.e(f"buffer_store_dwordx4 v[{ACC+4*q}:{ACC+4*q+3}], v5, s[{SWS}:{SWS+3}], s75 offen offset:{1024*q}{sc_st}")
    else:
        a.e(f"s_waitcnt vmcnt({vm.wait_for('bp')})")
        for r in range(16): a.e(f"v_add_f32 v{ACC + r}, v{ACC + r}, v{BPR + r}")
        for p in range(8): a.e(f"v_cvt_pk_bf16_f32 v{ACC + 16 + p}, v{ACC + 2 * p}, v{ACC + 2 * p + 1}")
        a.e("v_lshlrev_b32 v6, 10, v3")
        a.e("v_lshlrev_b32 v7, 5, v4")
        a.e("v_add_u32 v6, v6, v7")
        a.e("s_lshl_b32 s73, s73, 15")
        a.e("s_lshl_b32 s74, s74, 6")
        a.e("s_add_u32 s73, s73, s74")
        a.e(f"buffer_store_dwordx4 v[{ACC+16}:{ACC+19}], v6, s[{SO}:{SO+3}], s73 offen")
        a.e(f"buffer_store_dwordx4 v[{ACC+20}:{ACC+23}], v6, s[{SO}:{SO+3}], s73 offen offset:16")

def gen_splitk_kernel(mode, kidx):
    def fn(a, label):
        kernel_head(a, label)
        a.e("s_cmp_ge_u32 s2, 0x100")
        a.e(f"s_cbranch_scc1 {label}_end")
        st = Stamper(a); st.real(76); st.stamp()
        load_ptrs(a)
        lane_setup(a)
        a.e("s_waitcnt lgkmcnt(0)")
        gen_splitk(a, label, mode, 2, st)
        if STAMPS:
            a.e("s_waitcnt vmcnt(0)")
            st.stamp(); st.real(94); st.dump(48, 2, 60, kidx, vtmp=14, name=label)
        a.label(f"{label}_end")
        a.e("s_endpgm")
        return kernel_desc(label, 176)
    return fn
```

```python
from common import *
import k2b, k2g, os

SPIN_MAX = 1 << 16

def signal(a, L, cnt_off_sgpr, SWS=48):
    a.e("s_waitcnt vmcnt(0)")
    a.e("s_barrier")
    a.e("s_cmp_lg_u32 s60, 0")
    a.e(f"s_cbranch_scc1 {L}_nosig")
    a.e("v_mov_b32 v6, 0")
    a.e("v_mov_b32 v7, 1")
    a.e("s_mov_b64 exec, 1")
    a.e(f"buffer_atomic_add v7, v6, s[{SWS}:{SWS+3}], s{cnt_off_sgpr} offen sc1")
    a.e("s_mov_b64 exec, -1")
    a.label(f"{L}_nosig")
    a.flush_hist()

def wait_cnt(a, L, cnt_off_sgpr, target, SWS=48):
    a.e("s_cmp_lg_u32 s60, 0")
    a.e(f"s_cbranch_scc1 {L}_wdone")
    a.e("v_mov_b32 v6, 0")
    a.e("s_mov_b32 s58, 0")
    a.label(f"{L}_poll")
    a.e(f"buffer_load_dword v7, v6, s[{SWS}:{SWS+3}], s{cnt_off_sgpr} offen sc0 sc1")
    a.e("s_waitcnt vmcnt(0)")
    a.e("v_readfirstlane_b32 s57, v7")
    a.e(f"s_cmp_ge_u32 s57, {target}")
    a.e(f"s_cbranch_scc1 {L}_wdone")
    a.e("s_add_u32 s58, s58, 1")
    a.e(f"s_cmp_lt_u32 s58, {SPIN_MAX}")
    a.e(f"s_cbranch_scc1 {L}_poll")
    a.label(f"{L}_wdone")
    a.flush_hist()
    a.e("s_barrier")

def gen_k2(a, label):
    kernel_head(a, label)
    a.e("s_cmp_ge_u32 s2, 0x200")
    a.e(f"s_cbranch_scc1 {label}_end")
    load_ptrs(a)
    st = Stamper(a); st.real(76); st.stamp()
    a.e("s_cmp_ge_u32 s2, 0x100")
    a.e(f"s_cbranch_scc1 {label}_G")
    a.e("s_waitcnt lgkmcnt(0)")
    k2b.gen_attn2(a, label + "_A", 2, st, prio=int(os.environ.get('APRIO', '2')))
    if STAMPS:
        a.e("s_waitcnt vmcnt(0)")
        st.stamp(); st.real(94); st.dump(48, 2, 60, 1, vtmp=20, name=label)
    a.e("s_endpgm")
    a.flush_hist()
    a.label(f"{label}_G")
    st2 = Stamper(a); st2.n = 1
    a.e("s_sub_u32 s56, s2, 0x100")
    if os.environ.get('GPRIO'): a.e(f"s_setprio {os.environ['GPRIO']}")
    a.e("s_waitcnt lgkmcnt(0)")
    k2g.gen_up(a, label + "_U", 56, st2, sc=" sc0 sc1")
    a.e("s_lshl_b32 s59, s61, 6")
    a.e(f"s_add_u32 s59, s59, {CNT}")
    signal(a, label + "_S", 59)
    st2.stamp()
    a.e("s_and_b32 s61, s56, 7")
    a.e("s_lshl_b32 s61, s61, 2")
    a.e("s_lshr_b32 s62, s56, 3")
    a.e("s_and_b32 s62, s62, 3")
    a.e("s_add_u32 s61, s61, s62")
    a.e("s_lshr_b32 s61, s61, 1")
    a.e("s_lshl_b32 s59, s61, 6")
    a.e(f"s_add_u32 s59, s59, {CNT}")
    wait_cnt(a, label + "_W", 59, 16)
    st2.stamp()
    k2g.gen_splitk(a, label + "_D", 'down', 56, None, sc_ld=" sc0 sc1")
    if STAMPS:
        a.e("s_waitcnt vmcnt(0)")
        st2.stamp(); st2.real(94); st2.dump(48, 2, 60, 1, vtmp=14, name=label + "_g")
    a.label(f"{label}_end")
    a.e("s_endpgm")
    return kernel_desc(label, 192)
```

```python
import k1, k2a, k2g, k2b, k2m, os
def stages(cfg):
    if cfg == 'simple':
        return [("k1_qkv_kernel", 256, 256, 163840, k1.gen_k1),
                ("k2_attn_kernel", 512, 256, 81920, k2a.gen_attn),
                ("k3_up_kernel", 256, 256, 81920, k2g.gen_up_kernel),
                ("k4_down_kernel", 256, 256, 65536, k2g.gen_splitk_kernel('down', 3)),
                ("k5_wo_kernel", 256, 256, 65536, k2g.gen_splitk_kernel('wo', 4))]
    if cfg == 'simple2':
        return [("k1_qkv_kernel", 256, 256, 163840, k1.gen_k1),
                ("k2_attn_kernel", 256, 256, 81920, k2b.gen_attn2_kernel),
                ("k3_up_kernel", 256, 256, 81920, k2g.gen_up_kernel),
                ("k4_down_kernel", 256, 256, 65536, k2g.gen_splitk_kernel('down', 3)),
                ("k5_wo_kernel", 256, 256, 65536, k2g.gen_splitk_kernel('wo', 4))]
    if cfg == 'm3':
        return [("k1_qkv_kernel", 256, 256, 163840, k1.gen_k1),
                ("k2_mix_kernel", 512, 256, 81920, k2m.gen_k2),
                ("k5_wo_kernel", 256, 256, 65536, k2g.gen_splitk_kernel('wo', 2))]
    raise ValueError(cfg)
```

```python
import sys, importlib, os
sys.path.insert(0, 'gen')
from common import *
import k1, k2a
HEADER = open('cdna_kernels/' + NAME + '.s.ref').read().split("; Override launch geometry")[0]
def build(path, stages):
    launches = []
    descs = []
    body = Asm()
    for st in stages:
        label, grid, block, lds, fn = st
        launches.append(f"; @launch kernel={label} grid=({grid},1,1) block=({block},1,1) lds={lds}")
        descs.append(fn(body, label))
    s = HEADER + "\n".join(launches) + "\n"
    s += '.amdgcn_target "amdgcn-amd-amdhsa--gfx950"\n.text\n'
    s += body.text()
    s += '.section .rodata,"a"\n'
    for d in descs: s += ".p2align 6\n" + d
    open(path, 'w').write(s)
    print("wrote", path, len(s), "bytes; nops inserted:", body.nops)
if __name__ == '__main__':
    cfg = os.environ.get('CFG', 'simple')
    stages = [("k1_qkv_kernel", 256, 256, 163840, k1.gen_k1)]
    if cfg == 'attn':
        stages.append(("k2_attn_kernel", 512, 256, int(os.environ.get("ALDS", "53760")), k2a.gen_attn))
    else:
        import stages as S
        stages = S.stages(cfg)
    out = sys.argv[1] if len(sys.argv) > 1 else 'cdna_kernels/' + NAME + '.s'
    build(out, stages)
```

```python
from common import *
import os
C_SCALE = 0.25 * 1.4426950408889634

def gen_qkv(a, L, idreg, st=None, sc="", prefetch=True, hook=None):
    vm = VM()
    SX, SW, SWS, SGW = 40, 44, 48, 56
    a.e("v_and_b32 v1, 63, v0")
    a.e("v_lshrrev_b32 v2, 6, v0")
    a.e("v_readfirstlane_b32 s60, v2")
    a.e("v_and_b32 v3, 31, v1")
    a.e("v_lshrrev_b32 v4, 5, v1")
    a.e(f"s_and_b32 s3, s{idreg}, 7")
    a.e(f"s_lshr_b32 s4, s{idreg}, 3")
    a.e("s_and_b32 s5, s3, 1")
    a.e("s_lshl_b32 s5, s5, 2")
    a.e("s_and_b32 s6, s4, 3")
    a.e("s_add_u32 s62, s5, s6")
    a.e("s_lshr_b32 s5, s3, 1")
    a.e("s_lshl_b32 s5, s5, 3")
    a.e("s_lshr_b32 s6, s4, 2")
    a.e("s_add_u32 s61, s5, s6")
    srd(a, SX, P_AX, 2048 * 1024)
    srd(a, SW, P_WQKV, 512 * 3072)
    WB, XB = 0, 49152
    a.e("v_lshrrev_b32 v30, 3, v1")
    a.e("s_lshl_b32 s68, s61, 6")
    a.e("s_lshl_b32 s69, s60, 4")
    a.e("s_add_u32 s68, s68, s69")
    a.e("v_add_u32 v30, s68, v30")
    a.e("v_lshlrev_b32 v30, 10, v30")
    a.e("v_and_b32 v31, 7, v1")
    a.e("v_lshrrev_b32 v32, 4, v1")
    a.e("v_xor_b32 v33, v31, v32")
    a.e("v_xor_b32 v34, 4, v33")
    a.e("v_lshlrev_b32 v33, 4, v33")
    a.e("v_lshlrev_b32 v34, 4, v34")
    a.e("v_add_u32 v35, v30, v33")
    a.e("v_add_u32 v36, v30, v34")
    a.e("v_add_u32 v36, 0x2000, v36")
    a.e("s_lshl_b32 s69, s60, 11")
    a.e(f"s_add_u32 s69, s69, {XB}")
    def issue_X(q):
        for b in range(2):
            a.e(f"s_add_u32 m0, s69, {(q % 3) * 8192 + b * 1024}")
            a.e(f"s_movk_i32 s71, {q * 128}")
            a.e(f"buffer_load_dwordx4 v{35 + b}, s[{SX}:{SX+3}], s71 offen lds"); vm.issue(f'X{q}')
    issue_X(0)
    a.e("v_lshrrev_b32 v28, 3, v1")
    a.e("v_and_b32 v29, 3, v28")
    a.e("v_lshlrev_b32 v29, 1, v29")
    a.e("v_xor_b32 v29, v31, v29")
    a.e("v_lshlrev_b32 v29, 4, v29")
    a.e("s_lshl_b32 s68, s60, 3")
    a.e("v_add_u32 v28, s68, v28")
    a.e("v_mul_u32_u24 v28, 3072, v28")
    a.e("v_add_u32 v28, v28, v29")
    a.e("s_lshl_b32 s68, s62, 7")
    a.e("v_add_u32 v28, s68, v28")
    a.e("s_lshl_b32 s70, s60, 10")
    def issue_W(s):
        for seg in range(3):
            a.e(f"s_add_u32 m0, s70, {WB + (s % 4) * 12288 + seg * 4096}")
            a.e(f"s_mov_b32 s71, {s * 32 * 3072 + seg * 1024}")
            a.e(f"buffer_load_dwordx4 v28, s[{SW}:{SW+3}], s71 offen lds"); vm.issue(f'W{s}')
    issue_W(0)
    srd(a, SWS, P_WS, WS_USED)
    srd(a, SGW, P_GW, 1024)
    a.e("v_lshlrev_b32 v7, 4, v1")
    a.e("s_lshl_b32 s64, s61, 6")
    a.e("s_lshl_b32 s65, s62, 3")
    a.e("s_add_u32 s64, s64, s65")
    a.e("s_lshl_b32 s65, s60, 1")
    a.e("s_add_u32 s64, s64, s65")
    a.e("s_lshl_b32 s67, s64, 10")
    a.e(f"buffer_load_dwordx4 v[16:19], v7, s[{SX}:{SX+3}], s67 offen"); vm.issue('prep')
    a.e(f"buffer_load_dwordx4 v[20:23], v7, s[{SX}:{SX+3}], s67 offen offset:1024"); vm.issue('prep')
    a.e(f"buffer_load_dwordx4 v[24:27], v7, s[{SGW}:{SGW+3}], 0 offen"); vm.issue('prep')
    issue_W(1); issue_X(1); issue_W(2); issue_W(3); issue_X(2)
    a.e("v_lshrrev_b32 v37, 1, v3")
    a.e("v_and_b32 v37, 7, v37")
    a.e("v_lshlrev_b32 v38, 7, v3")
    a.e("s_and_b32 s66, s60, 1")
    a.e("s_lshl_b32 s68, s66, 12")
    a.e(f"s_add_u32 s68, s68, {XB}")
    a.e("v_add_u32 v38, s68, v38")
    for t in range(4):
        a.e(f"v_add_u32 v39, {2*t}, v4")
        a.e("v_xor_b32 v39, v39, v37")
        a.e("v_lshlrev_b32 v39, 4, v39")
        a.e(f"v_add_u32 v{40+t}, v38, v39")
        a.e(f"v_xor_b32 v{44+t}, 0x1000, v{40+t}")
    a.e("v_lshrrev_b32 v48, 1, v32")
    a.e("v_lshlrev_b32 v48, 3, v48")
    a.e("v_and_b32 v49, 15, v1")
    a.e("v_lshrrev_b32 v50, 2, v49")
    a.e("v_add_u32 v48, v48, v50")
    a.e("v_lshlrev_b32 v48, 7, v48")
    a.e("v_and_b32 v51, 3, v49")
    a.e("v_lshlrev_b32 v51, 3, v51")
    a.e("v_add_u32 v48, v48, v51")
    a.e("v_and_b32 v51, 1, v32")
    a.e("v_xor_b32 v52, s60, v50")
    a.e("v_lshlrev_b32 v52, 5, v52")
    a.e("v_lshlrev_b32 v53, 12, v51")
    a.e("v_add_u32 v52, v52, v53")
    a.e("v_add_u32 v52, v52, v48")
    a.e("s_and_b32 s68, s60, 2")
    a.e("v_add_u32 v53, s68, v51")
    a.e("v_xor_b32 v53, v53, v50")
    a.e("v_lshlrev_b32 v53, 5, v53")
    a.e("v_add_u32 v53, v53, v48")
    a.e("v_add_u32 v53, 0x2000, v53")
    ACC = 64
    for r in range(48): a.e(f"v_mov_b32 v{ACC + r}, 0")
    a.e(f"s_waitcnt vmcnt({vm.wait_for('prep')})")
    for (xr, acc) in ((16, 54), (20, 55)):
        for q in range(4):
            a.e(f"v_lshlrev_b32 v56, 16, v{xr+q}")
            a.e(f"v_and_b32 v57, 0xffff0000, v{xr+q}")
            a.e(f"v_lshlrev_b32 v58, 16, v{24+q}")
            a.e(f"v_and_b32 v59, 0xffff0000, v{24+q}")
            if q == 0: a.e(f"v_mul_f32 v{acc}, v56, v58")
            else: a.e(f"v_fmac_f32 v{acc}, v56, v58")
            a.e(f"v_fmac_f32 v{acc}, v57, v59")
    wave_sum_dpp(a, 54); wave_sum_dpp(a, 55)
    for r in (54, 55):
        a.e(f"v_mul_f32 v{r}, {f32(-1.4426950408889634)}, v{r}")
        a.e(f"v_exp_f32 v{r}, v{r}")
        a.e(f"v_add_f32 v{r}, 1.0, v{r}")
        a.e(f"v_rcp_f32 v{r}, v{r}")
    a.e("v_cmp_eq_u32 vcc, 63, v1")
    a.e("s_and_saveexec_b64 s[12:13], vcc")
    a.e("s_lshl_b32 s72, s64, 2")
    a.e(f"s_add_u32 s72, s72, {GG}")
    a.e("v_mov_b32 v56, 0")
    a.e(f"buffer_store_dwordx2 v[54:55], v56, s[{SWS}:{SWS+3}], s72 offen{sc}"); vm.issue('st')
    a.e("s_mov_b64 exec, s[12:13]")
    FR = 112
    def reads(kk):
        s, k2 = kk >> 1, kk & 1
        q, t = kk >> 2, kk & 3
        f = FR + 16 * (kk & 1)
        a.e(f"ds_read_b128 v[{f}:{f+3}], v{40+t} offset:{(q % 3) * 8192}")
        a.e(f"ds_read_b128 v[{f+4}:{f+7}], v{44+t} offset:{(q % 3) * 8192}")
        o = WB + (s % 4) * 12288 + k2 * 2048
        a.e(f"ds_read_b64_tr_b16 v[{f+8}:{f+9}], v52 offset:{o}")
        a.e(f"ds_read_b64_tr_b16 v[{f+10}:{f+11}], v52 offset:{o + 512}")
        a.e(f"ds_read_b64_tr_b16 v[{f+12}:{f+13}], v53 offset:{o}")
        a.e(f"ds_read_b64_tr_b16 v[{f+14}:{f+15}], v53 offset:{o + 512}")
    def mfmas(kk):
        f = FR + 16 * (kk & 1)
        A = [f"v[{ACC+16*s}:{ACC+16*s+15}]" for s in range(3)]
        a.e(f"v_mfma_f32_32x32x16_bf16 {A[0]}, v[{f+8}:{f+11}], v[{f}:{f+3}], {A[0]}")
        a.e(f"v_mfma_f32_32x32x16_bf16 {A[1]}, v[{f+8}:{f+11}], v[{f+4}:{f+7}], {A[1]}")
        a.e(f"v_mfma_f32_32x32x16_bf16 {A[2]}, v[{f}:{f+3}], v[{f+12}:{f+15}], {A[2]}")
    PF = []
    if prefetch:
        a.e(f"s_lshl_b32 s14, s{idreg}, 2")
        a.e("s_add_u32 s14, s14, s60")
        a.e("s_lshl_b32 s14, s14, 10")
        a.e("s_add_u32 s15, s14, 0x100000")
        for i, (ptr, nb) in enumerate(((P_WG, 512 * 2752), (P_WU, 512 * 2752), (P_WD, 1376 * 1024), (P_WO, 512 * 1024))):
            PF.append((ptr, nb, 14))
            if nb > 0x100000: PF.append((ptr, nb, 15))
    def prefetch_one(i):
        ptr, nb, so = PF[i]
        srd(a, 8, ptr, nb)
        a.e(f"buffer_load_dwordx4 v[152:155], v7, s[8:11], s{so} offen"); vm.issue('pf')
    if st: st.stamp()
    for s in range(16):
        tags = [f'W{s}'] + ([f'X{s >> 1}'] if s % 2 == 0 else [])
        a.e(f"s_waitcnt vmcnt({vm.wait_for(*tags)}) lgkmcnt(0)")
        a.e("s_barrier")
        if s in (0, 8) and st: st.stamp()
        reads(2 * s)
        if s > 0: mfmas(2 * s - 1)
        if s >= 1 and s + 3 < 16: issue_W(s + 3)
        if s >= 2 and s % 2 == 0 and (s - 2) // 2 + 3 < 8: issue_X((s - 2) // 2 + 3)
        if s == 13:
            for i in range(len(PF)): prefetch_one(i)
        if hook: hook(s, vm)
        a.e("s_waitcnt lgkmcnt(0)")
        reads(2 * s + 1)
        mfmas(2 * s)
    a.e("s_waitcnt lgkmcnt(0)")
    mfmas(31)
    if st: st.stamp()
    a.e("s_lshl_b32 s63, s62, 2")
    a.e("s_add_u32 s63, s63, s60")
    a.e("s_lshl_b32 s64, s61, 1")
    a.e("s_add_u32 s65, s64, s66")
    a.e("s_xor_b32 s66, s65, 1")
    a.e(f"s_mov_b32 s72, {f32(C_SCALE)}")
    a.e("s_lshl_b32 s73, s63, 6")
    for i, stt in enumerate((65, 66)):
        A = ACC + 16 * i; T = FR + 16 * i
        for r in range(8): a.e(f"v_mul_f32 v{A+r}, s72, v{A+r}")
        for p in range(4): a.e(f"v_cvt_pk_bf16_f32 v{T+p}, v{A+2*p}, v{A+2*p+1}")
        for p in range(4): a.e(f"v_cvt_pk_bf16_f32 v{T+4+p}, v{A+8+2*p}, v{A+8+2*p+1}")
        a.e(f"s_add_u32 s74, s73, s{stt}")
        a.e("s_lshl_b32 s75, s74, 10")
        a.e(f"s_add_u32 s75, s75, {QF}")
        a.e(f"buffer_store_dwordx4 v[{T}:{T+3}], v7, s[{SWS}:{SWS+3}], s75 offen{sc}")
        a.e("s_lshl_b32 s75, s74, 11")
        a.e(f"s_add_u32 s75, s75, {KVF}")
        a.e(f"buffer_store_dwordx4 v[{T+4}:{T+7}], v7, s[{SWS}:{SWS+3}], s75 offen{sc}")
        n = 54 + i
        a.e(f"v_mul_f32 v{n}, v{A+8}, v{A+8}")
        for r in range(1, 8): a.e(f"v_fmac_f32 v{n}, v{A+8+r}, v{A+8+r}")
        a.e(f"v_mov_b32 v56, v{n}")
        a.e(f"v_permlane32_swap_b32 v{n}, v56")
        a.e(f"v_add_f32 v{n}, v{n}, v56")
        wave_max_dpp(a, n)
        a.e("v_cmp_eq_u32 vcc, 31, v1")
        a.e("s_and_saveexec_b64 s[12:13], vcc")
        a.e("s_lshl_b32 s75, s74, 2")
        a.e(f"s_add_u32 s75, s75, {KMAX}")
        a.e("v_mov_b32 v56, 0")
        a.e(f"buffer_store_dword v{n}, v56, s[{SWS}:{SWS+3}], s75 offen{sc}")
        a.e("s_mov_b64 exec, s[12:13]")
    VA = ACC + 32; T = FR + 8
    for p in range(8): a.e(f"v_cvt_pk_bf16_f32 v{T+p}, v{VA+2*p}, v{VA+2*p+1}") if False else None
    T = 96 + 16
    T = 144
    for p in range(8): a.e(f"v_cvt_pk_bf16_f32 v{T+p}, v{VA+2*p}, v{VA+2*p+1}")
    a.e("v_lshrrev_b32 v56, 4, v1")
    a.e("v_and_b32 v56, 1, v56")
    a.e("v_lshlrev_b32 v56, 17, v56")
    a.e("v_lshlrev_b32 v57, 8, v4")
    a.e("v_add_u32 v56, v56, v57")
    a.e("v_and_b32 v57, 15, v1")
    a.e("v_lshlrev_b32 v57, 4, v57")
    a.e("v_add_u32 v56, v56, v57")
    a.e("s_lshl_b32 s74, s62, 2")
    a.e("s_and_b32 s75, s60, 2")
    a.e("s_add_u32 s74, s74, s75")
    a.e("s_lshl_b32 s74, s74, 6")
    a.e("s_add_u32 s74, s74, s65")
    a.e("s_lshl_b32 s74, s74, 11")
    a.e(f"s_add_u32 s74, s74, {KVF}")
    a.e(f"buffer_store_dwordx4 v[{T}:{T+3}], v56, s[{SWS}:{SWS+3}], s74 offen offset:1024{sc}")
    a.e(f"buffer_store_dwordx4 v[{T+4}:{T+7}], v56, s[{SWS}:{SWS+3}], s74 offen offset:1536{sc}")

def gen_k1b(a, label):
    kernel_head(a, label)
    a.e("s_cmp_ge_u32 s2, 0x100")
    a.e(f"s_cbranch_scc1 {label}_end")
    st = Stamper(a); st.real(76); st.stamp()
    load_ptrs(a)
    a.e("s_waitcnt lgkmcnt(0)")
    gen_qkv(a, label, 2, st)
    a.e("s_cmp_lg_u32 s2, 0")
    a.e(f"s_cbranch_scc1 {label}_nocnt")
    a.e("s_cmp_lg_u32 s60, 0")
    a.e(f"s_cbranch_scc1 {label}_nocnt")
    a.m(f"""
    v_mov_b32 v48, 0
    v_mov_b32 v49, 0
    v_mov_b32 v50, 0
    v_mov_b32 v51, 0
    s_mov_b32 s72, {CNT}
    buffer_store_dwordx4 v[48:51], v7, s[48:51], s72 offen
    buffer_store_dwordx4 v[48:51], v7, s[48:51], s72 offen offset:1024
    buffer_store_dwordx4 v[48:51], v7, s[48:51], s72 offen offset:2048
    buffer_store_dwordx4 v[48:51], v7, s[48:51], s72 offen offset:3072
    """)
    a.label(f"{label}_nocnt")
    if STAMPS:
        a.e("s_waitcnt vmcnt(0)")
        st.stamp(); st.real(94); st.dump(48, 2, 60, 0, vtmp=20, name=label)
    a.label(f"{label}_end")
    a.e("s_endpgm")
    return kernel_desc(label, 160)
```

```python
from common import *
import os

def gen_attn2(a, L, idreg=2, st=None, kidx=1, prio=None, sc='', mid=True, scl=''):
    vm = VM()
    SWS = 48
    if prio is not None: a.e("s_setprio 3")
    a.e("v_and_b32 v1, 63, v0")
    a.e("v_lshrrev_b32 v2, 6, v0")
    a.e("v_readfirstlane_b32 s60, v2")
    a.e("v_lshlrev_b32 v5, 4, v1")
    a.e(f"s_and_b32 s3, s{idreg}, 7")
    a.e("s_lshl_b32 s3, s3, 2")
    a.e(f"s_lshr_b32 s4, s{idreg}, 3")
    a.e("s_and_b32 s4, s4, 3")
    a.e("s_add_u32 s61, s3, s4")
    a.e(f"s_lshr_b32 s62, s{idreg}, 5")
    srd(a, SWS, P_WS, WS_USED)
    a.e("s_lshl_b32 s64, s61, 6")
    a.e("s_lshl_b32 s65, s60, 1")
    a.e("s_add_u32 s66, s64, s65")
    a.e("s_lshl_b32 s66, s66, 11")
    a.e(f"s_add_u32 s66, s66, {KVF}")
    a.e("s_lshl_b32 s67, s60, 12")
    NS, CH = 4, 8
    NCH = 64 // CH
    def issue_chunk(c):
        for i in range(4):
            a.e(f"s_add_u32 m0, s67, {(c % NS) * 16384 + i * 1024}")
            a.e(f"s_add_u32 s68, s66, {c * 16384 + i * 1024}")
            a.e(f"buffer_load_dwordx4 v5, s[{SWS}:{SWS+3}], s68 offen{scl} lds"); vm.issue(f'c{c}')
    issue_chunk(0)
    a.e("v_and_b32 v3, 31, v1")
    a.e("v_lshrrev_b32 v4, 5, v1")
    a.e("s_lshl_b32 s63, s62, 3")
    a.e("s_add_u32 s63, s63, s65")
    Q, C, S, O, P, KB, VB = [8, 12], [16, 32], [48, 64], [80, 96], [112, 120], [128, 132], [136, 144]
    a.e("s_add_u32 s65, s64, s63")
    a.e("s_lshl_b32 s65, s65, 10")
    a.e(f"s_add_u32 s65, s65, {QF}")
    a.e(f"buffer_load_dwordx4 v[{Q[0]}:{Q[0]+3}], v5, s[{SWS}:{SWS+3}], s65 offen{scl}"); vm.issue('q')
    a.e(f"buffer_load_dwordx4 v[{Q[1]}:{Q[1]+3}], v5, s[{SWS}:{SWS+3}], s65 offen offset:1024{scl}"); vm.issue('q')
    a.e("v_lshlrev_b32 v6, 2, v1")
    a.e("s_lshl_b32 s65, s64, 2")
    a.e(f"s_add_u32 s65, s65, {KMAX}")
    a.e(f"buffer_load_dword v152, v6, s[{SWS}:{SWS+3}], s65 offen{scl}"); vm.issue('q')
    a.e("v_lshlrev_b32 v6, 2, v3")
    a.e("s_lshl_b32 s65, s63, 7")
    a.e(f"s_add_u32 s65, s65, {GG}")
    a.e(f"buffer_load_dword v153, v6, s[{SWS}:{SWS+3}], s65 offen{scl}"); vm.issue('q')
    a.e(f"buffer_load_dword v154, v6, s[{SWS}:{SWS+3}], s65 offen offset:128{scl}"); vm.issue('q')
    a.e("v_lshlrev_b32 v6, 8, v4")
    a.e("v_and_b32 v7, 15, v1")
    a.e("v_lshlrev_b32 v7, 4, v7")
    a.e("v_add_u32 v6, v6, v7")
    if os.environ.get('ONES', '2') == '2':
        a.e("v_and_b32 v157, 27, v1")
        a.e("v_cmp_eq_u32 vcc, 16, v157")
        a.e("v_mov_b32 v157, 0x3f803f80")
        a.e("v_cndmask_b32 v157, 0, v157, vcc")
        for r in range(16): a.e(f"v_mov_b32 v{VB[0] + r}, v157")
    else:
        for r in range(16): a.e(f"v_mov_b32 v{VB[0] + r}, 0x3f803f80")
    for x in range(2):
        for r in range(16): a.e(f"v_mov_b32 v{O[x]+r}, 0")
    a.e("s_mov_b32 s70, 0xffff")
    a.e("s_mov_b32 s71, 0xffff")
    a.e(f"s_waitcnt vmcnt({vm.wait_for('q')})")
    wave_max_dpp(a, 152, half_only=False)
    a.e("v_readlane_b32 s69, v152, 63")
    for x in range(2):
        t = 155 + x
        for q in range(4):
            a.e(f"v_lshlrev_b32 v157, 16, v{Q[x]+q}")
            a.e(f"v_and_b32 v158, 0xffff0000, v{Q[x]+q}")
            if q == 0: a.e(f"v_mul_f32 v{t}, v157, v157")
            else: a.e(f"v_fmac_f32 v{t}, v157, v157")
            a.e(f"v_fmac_f32 v{t}, v158, v158")
        a.e(f"v_mov_b32 v157, v{t}")
        a.e(f"v_permlane32_swap_b32 v{t}, v157")
        a.e(f"v_add_f32 v{t}, v{t}, v157")
        a.e(f"v_mul_f32 v{t}, s69, v{t}")
        a.e(f"v_sqrt_f32 v{t}, v{t}")
        a.e(f"v_mul_f32 v{t}, {f32(-1.01)}, v{t}")
        for r in range(16): a.e(f"v_mov_b32 v{C[x]+r}, v{t}")
    def off(T):
        c, t = T // CH, T % CH
        return (c % NS) * 16384 + t * 2048
    X = os.environ.get('XP', '')
    def rdK(T):
        if 'nods' in X and T > 1: return
        k = KB[T & 1]
        a.e(f"ds_read_b128 v[{k}:{k+3}], v5 offset:{off(T)}")
    def rdV(T):
        v = VB[T & 1]; o = off(T) + 1024
        if 'nods' in X and T > 1: return
        a.e("s_mov_b64 exec, s[70:71]")
        a.e(f"ds_read_b128 v[{v}:{v+3}], v6 offset:{o}")
        a.e(f"ds_read_b128 v[{v+4}:{v+7}], v6 offset:{o + 512}")
        a.e("s_mov_b64 exec, -1")
    def QK(x, T):
        k = KB[T & 1]; s = S[x]
        if 'noqk' in X and T > 1: return
        a.e(f"v_mfma_f32_32x32x16_bf16 v[{s}:{s+15}], v[{k}:{k+3}], v[{Q[x]}:{Q[x]+3}], v[{C[x]}:{C[x]+15}]")
    def PV(x, T, half):
        v = VB[T & 1] + 4 * half; p = P[x] + 4 * half; o = O[x]
        if 'nopv' in X and T > 1: return
        a.e(f"v_mfma_f32_32x32x16_bf16 v[{o}:{o+15}], v[{v}:{v+3}], v[{p}:{p+3}], v[{o}:{o+15}]")
    if prio is not None: a.e(f"s_setprio {prio}")
    if st: st.stamp()
    a.e(f"s_waitcnt vmcnt({vm.wait_for('c0')})")
    a.e("s_barrier")
    if st: st.stamp()
    rdK(0); rdV(0)
    a.e("s_waitcnt lgkmcnt(2)")
    QK(0, 0)
    def phase(x, T):
        s = S[x]; p = P[x]; y = 1 - x
        def E(i): a.e(f"v_exp_f32 v{s+i}, v{s+i}")
        def Cv(i):
            if 'nocv' in X and T > 1: return
            a.e(f"v_cvt_pk_bf16_f32 v{p+i}, v{s+2*i}, v{s+2*i+1}")
        E(0); E(1)
        if x == 0:
            if T > 0: PV(1, T - 1, 1)
        else:
            PV(0, T, 1)
        E(2); E(3); Cv(0)
        if x == 0:
            if T % CH == CH - 1 and T + 1 < 64:
                c1 = (T + 1) // CH
                a.e(f"s_waitcnt vmcnt({vm.wait_for(f'c{c1}')})")
                a.e("s_barrier")
            if T + 1 < 64: rdK(T + 1)
        E(4); E(5); Cv(1)
        if x == 0:
            QK(1, T)
        else:
            if T + 1 < 64:
                a.e("s_waitcnt lgkmcnt(0)")
                QK(0, T + 1)
        E(6); E(7); Cv(2)
        if x == 0:
            if T + 1 < 64: rdV(T + 1)
            if T < NS - 1: issue_chunk(T + 1)
            if T % CH == CH - 1 and T + 1 < 64:
                c1 = (T + 1) // CH
                if c1 + NS - 1 < NCH: issue_chunk(c1 + NS - 1)
        E(8); E(9); Cv(3); E(10); E(11)
        PV(x, T, 0)
        Cv(4); E(12); E(13); Cv(5); E(14); E(15); Cv(6); Cv(7)
    a.e("s_waitcnt lgkmcnt(0)")
    for T in range(64):
        phase(0, T); phase(1, T)
        if T == 31 and st and mid: st.stamp()
    PV(1, 63, 1)
    if st: st.stamp()
    if prio is not None: a.e("s_setprio 0")
    a.e("s_nop 7"); a.e("s_nop 7")
    for x in range(2):
        LS = O[x] + 8
        a.e(f"v_mov_b32 v157, {f32(2.0 ** -40)}")
        a.e(f"v_cmp_nge_f32 vcc, v{LS}, v157")
        a.e("s_cmp_eq_u64 vcc, 0")
        a.e(f"s_cbranch_scc1 {L}_ok{x}")
        s = S[0]; k = KB[0]; v = VB[0]; p = P[0]
        a.e(f"s_lshl_b32 s72, s64, 11")
        a.e(f"s_add_u32 s72, s72, {KVF}")
        a.e(f"v_mov_b32 v157, {f32(-3.0e38)}")
        a.e("s_mov_b32 s73, 0")
        a.label(f"{L}_mx{x}")
        a.e("s_add_u32 s68, s72, s73")
        a.e(f"buffer_load_dwordx4 v[{k}:{k+3}], v5, s[{SWS}:{SWS+3}], s68 offen{scl}")
        a.e("s_waitcnt vmcnt(0)")
        a.e(f"v_mfma_f32_32x32x16_bf16 v[{s}:{s+15}], v[{k}:{k+3}], v[{Q[x]}:{Q[x]+3}], 0")
        for i in range(8): a.e(f"v_max3_f32 v157, v157, v{s+2*i}, v{s+2*i+1}")
        a.e("s_add_u32 s73, s73, 2048")
        a.e("s_cmp_lt_u32 s73, 131072")
        a.e(f"s_cbranch_scc1 {L}_mx{x}")
        a.e("v_mov_b32 v158, v157")
        a.e("v_permlane32_swap_b32 v157, v158")
        a.e("v_max_f32 v157, v157, v158")
        a.e("v_sub_f32 v157, 0, v157")
        for r in range(16): a.e(f"v_mov_b32 v{C[x]+r}, v157")
        for r in range(16): a.e(f"v_mov_b32 v{O[x]+r}, 0")
        a.e("s_mov_b32 s73, 0")
        a.label(f"{L}_sl{x}")
        a.e("s_add_u32 s68, s72, s73")
        a.e(f"buffer_load_dwordx4 v[{k}:{k+3}], v5, s[{SWS}:{SWS+3}], s68 offen{scl}")
        a.e("s_mov_b64 exec, s[70:71]")
        a.e(f"buffer_load_dwordx4 v[{v}:{v+3}], v6, s[{SWS}:{SWS+3}], s68 offen offset:1024{scl}")
        a.e(f"buffer_load_dwordx4 v[{v+4}:{v+7}], v6, s[{SWS}:{SWS+3}], s68 offen offset:1536{scl}")
        a.e("s_mov_b64 exec, -1")
        a.e("s_waitcnt vmcnt(0)")
        a.e(f"v_mfma_f32_32x32x16_bf16 v[{s}:{s+15}], v[{k}:{k+3}], v[{Q[x]}:{Q[x]+3}], v[{C[x]}:{C[x]+15}]")
        for i in range(16): a.e(f"v_exp_f32 v{s+i}, v{s+i}")
        for i in range(8): a.e(f"v_cvt_pk_bf16_f32 v{p+i}, v{s+2*i}, v{s+2*i+1}")
        a.e(f"v_mfma_f32_32x32x16_bf16 v[{O[x]}:{O[x]+15}], v[{v}:{v+3}], v[{p}:{p+3}], v[{O[x]}:{O[x]+15}]")
        a.e(f"v_mfma_f32_32x32x16_bf16 v[{O[x]}:{O[x]+15}], v[{v+4}:{v+7}], v[{p+4}:{p+7}], v[{O[x]}:{O[x]+15}]")
        a.e("s_add_u32 s73, s73, 2048")
        a.e("s_cmp_lt_u32 s73, 131072")
        a.e("s_nop 7")
        a.e(f"s_cbranch_scc1 {L}_sl{x}")
        a.e("s_nop 7"); a.e("s_nop 7")
        a.label(f"{L}_ok{x}")
        a.flush_hist()
    for x in range(2):
        LS = O[x] + 8
        a.e(f"v_rcp_f32 v157, v{LS}")
        a.e(f"v_mul_f32 v157, v157, v{153+x}")
        for r in range(8): a.e(f"v_mul_f32 v{O[x]+r}, v{O[x]+r}, v157")
        for p_ in range(4): a.e(f"v_cvt_pk_bf16_f32 v{P[x]+p_}, v{O[x]+2*p_}, v{O[x]+2*p_+1}")
        if x == 0:
            a.e("s_lshl_b32 s65, s63, 5")
            a.e("s_add_u32 s65, s65, s61")
            a.e("s_lshl_b32 s65, s65, 10")
            a.e(f"s_add_u32 s65, s65, {OF}")
        else:
            a.e("s_add_u32 s65, s65, 0x8000")
        a.e(f"buffer_store_dwordx4 v[{P[x]}:{P[x]+3}], v5, s[{SWS}:{SWS+3}], s65 offen{sc}")

def gen_attn2_kernel(a, label):
    kernel_head(a, label)
    a.e("s_cmp_ge_u32 s2, 0x100")
    a.e(f"s_cbranch_scc1 {label}_end")
    st = Stamper(a); st.real(76); st.stamp()
    load_ptrs(a)
    a.e("s_waitcnt lgkmcnt(0)")
    gen_attn2(a, label, 2, st)
    if STAMPS:
        a.e("s_waitcnt vmcnt(0)")
        st.stamp(); st.real(94); st.dump(48, 2, 60, 1, vtmp=20, name=label)
    a.label(f"{label}_end")
    a.e("s_endpgm")
    return kernel_desc(label, 160)
```

```python
from common import *
import os
PRIO = os.environ.get('GP', '')
def setprio(a, i):
    if PRIO: a.e(f's_setprio {PRIO[i]}')
NLOG2E = -1.4426950408889634

def lane_setup(a):
    a.e("v_and_b32 v1, 63, v0")
    a.e("v_lshrrev_b32 v2, 6, v0")
    a.e("v_readfirstlane_b32 s60, v2")
    a.e("v_and_b32 v3, 31, v1")
    a.e("v_lshrrev_b32 v4, 5, v1")
    a.e("v_lshlrev_b32 v5, 4, v1")

def gen_up_body(a, L, nt, st=None, sc="", hook=None):
    vm = VM()
    SW, SX, SWS = 40, 44, 48
    RB = nt * 64
    BLK = 16 * RB
    STG = 4 * BLK
    NSTG = 4
    XB = 49152
    lpr = RB // 16
    a.e("s_lshl_b32 s63, s61, 2")
    a.e("s_add_u32 s63, s63, s60")
    a.e("v_lshrrev_b32 v6, 3, v1")
    a.e("s_lshl_b32 s68, s63, 5")
    a.e("v_add_u32 v6, s68, v6")
    a.e("v_lshlrev_b32 v6, 10, v6")
    a.e("v_and_b32 v7, 7, v1")
    a.e("v_lshrrev_b32 v11, 4, v1")
    a.e("v_xor_b32 v7, v7, v11")
    a.e("v_xor_b32 v12, 4, v7")
    a.e("v_lshlrev_b32 v7, 4, v7")
    a.e("v_lshlrev_b32 v12, 4, v12")
    a.e("v_add_u32 v14, v6, v7")
    a.e("v_add_u32 v15, v6, v12")
    a.e("v_add_u32 v15, 0x2000, v15")
    a.e("s_lshl_b32 s67, s60, 12")
    a.e(f"s_add_u32 s67, s67, {XB}")
    def issue_X(q):
        for b in range(4):
            a.e(f"s_add_u32 m0, s67, {(q % 2) * 16384 + b * 1024}")
            a.e(f"s_mov_b32 s66, {q * 128 + (b >> 1) * 16384}")
            a.e(f"buffer_load_dwordx4 v{14 + (b & 1)}, s[{SX}:{SX+3}], s66 offen lds"); vm.issue(f'X{q}')
    VD = 8
    for i in range(nt):
        a.e(f"v_add_u32 v6, {64 * i}, v1")
        if lpr == 8:
            a.e("v_lshrrev_b32 v7, 3, v6")
        else:
            a.e("v_mul_u32_u24 v7, 43691, v6")
            a.e("v_lshrrev_b32 v7, 19, v7")
        a.e(f"v_mul_u32_u24 v11, {lpr}, v7")
        a.e("v_sub_u32 v11, v6, v11")
        a.e("v_mul_u32_u24 v7, 2752, v7")
        a.e("v_lshlrev_b32 v11, 4, v11")
        a.e(f"v_add_u32 v{VD + i}, v7, v11")
    a.e("s_lshr_b32 s64, s60, 1")
    a.e(f"s_mul_i32 s64, s64, {16 * 2752}")
    a.e("s_lshl_b32 s65, s62, 6")
    a.e("s_add_u32 s64, s64, s65")
    a.e(f"s_mul_i32 s65, s60, {BLK}")
    def issue_W(s):
        for i in range(nt):
            a.e(f"s_add_u32 m0, s65, {(s % NSTG) * STG + i * 1024}")
            a.e(f"s_add_u32 s66, s64, {s * 32 * 2752}")
            a.e(f"buffer_load_dwordx4 v{VD + i}, s[{SW}:{SW+3}], s66 offen lds"); vm.issue(f'W{s}')
    issue_W(0); issue_X(0); issue_W(1); issue_W(2); issue_X(1); issue_W(3)
    a.e("v_lshrrev_b32 v6, 4, v1")
    a.e("v_lshrrev_b32 v7, 1, v6")
    a.e("v_lshlrev_b32 v7, 3, v7")
    a.e("v_and_b32 v11, 15, v1")
    a.e("v_lshrrev_b32 v12, 2, v11")
    a.e("v_add_u32 v7, v7, v12")
    a.e(f"v_mul_u32_u24 v7, {RB}, v7")
    a.e("v_and_b32 v12, 1, v6")
    a.e("v_lshlrev_b32 v12, 5, v12")
    a.e("v_add_u32 v7, v7, v12")
    a.e("v_and_b32 v12, 3, v11")
    a.e("v_lshlrev_b32 v12, 3, v12")
    a.e("v_add_u32 v7, v7, v12")
    XA = 168
    a.e("v_lshrrev_b32 v11, 1, v3")
    a.e("v_and_b32 v11, 7, v11")
    a.e("v_lshlrev_b32 v12, 7, v3")
    a.e("v_add_u32 v12, s67, v12")
    for t in range(4):
        a.e(f"v_add_u32 v6, {2*t}, v4")
        a.e("v_xor_b32 v6, v6, v11")
        a.e("v_lshlrev_b32 v6, 4, v6")
        a.e(f"v_add_u32 v{XA+t}, v12, v6")
    ACC = 16
    for r in range(32 * nt): a.e(f"v_mov_b32 v{ACC + r}, 0")
    FR = 112
    def reads(kk):
        s, k2 = kk >> 1, kk & 1
        q, t4 = kk >> 2, kk & 3
        f = FR + 28 * (kk & 1)
        a.e(f"ds_read_b128 v[{f}:{f+3}], v{XA+t4} offset:{(q % 2) * 16384}")
        for mat in range(2):
            for t in range(nt):
                o = (s % NSTG) * STG + (k2 * 2 + mat) * BLK + t * 64
                g = f + 4 + (mat * nt + t) * 4
                a.e(f"ds_read_b64_tr_b16 v[{g}:{g+1}], v7 offset:{o}")
                a.e(f"ds_read_b64_tr_b16 v[{g+2}:{g+3}], v7 offset:{o + 4 * RB}")
    def mfmas(kk):
        f = FR + 28 * (kk & 1)
        for mat in range(2):
            for t in range(nt):
                g = f + 4 + (mat * nt + t) * 4
                A = ACC + (mat * nt + t) * 16
                a.e(f"v_mfma_f32_32x32x16_bf16 v[{A}:{A+15}], v[{g}:{g+3}], v[{f}:{f+3}], v[{A}:{A+15}]")
    if st: st.stamp()
    setprio(a, 1)
    for s in range(16):
        tags = [f'W{s}'] + ([f'X{s >> 1}'] if s % 2 == 0 else [])
        a.e(f"s_waitcnt vmcnt({vm.wait_for(*tags)}) lgkmcnt(0)")
        a.e("s_barrier")
        reads(2 * s)
        if s > 0: mfmas(2 * s - 1)
        if s >= 1 and s + 3 < 16: issue_W(s + 3)
        if s >= 2 and s % 2 == 0 and (s - 2) // 2 + 2 < 8: issue_X((s - 2) // 2 + 2)
        if hook: hook(s)
        a.e("s_waitcnt lgkmcnt(0)")
        reads(2 * s + 1)
        mfmas(2 * s)
    a.e("s_waitcnt lgkmcnt(0)")
    mfmas(31)
    if st: st.stamp()
    setprio(a, 2)
    T = FR
    for t in range(nt):
        G = ACC + t * 16; U = ACC + (nt + t) * 16
        for r in range(16): a.e(f"v_mul_f32 v{T + r}, {f32(NLOG2E)}, v{G + r}")
        for r in range(16): a.e(f"v_exp_f32 v{T + r}, v{T + r}")
        for r in range(16): a.e(f"v_mul_f32 v{G + r}, v{G + r}, v{U + r}")
        for r in range(16): a.e(f"v_add_f32 v{T + r}, 1.0, v{T + r}")
        for r in range(16): a.e(f"v_rcp_f32 v{T + r}, v{T + r}")
        for r in range(16): a.e(f"v_mul_f32 v{G + r}, v{G + r}, v{T + r}")
        for p in range(8): a.e(f"v_cvt_pk_bf16_f32 v{U + p}, v{G + 2 * p}, v{G + 2 * p + 1}")
        if t == 0:
            a.e("s_mul_i32 s66, s63, 86")
            a.e("s_lshl_b32 s68, s62, 1")
            a.e("s_add_u32 s66, s66, s68")
            a.e("s_lshl_b32 s66, s66, 10")
            a.e(f"s_add_u32 s66, s66, {HF}")
        else:
            a.e("s_add_u32 s66, s66, 2048")
        a.e(f"buffer_store_dwordx4 v[{U}:{U+3}], v5, s[{SWS}:{SWS+3}], s66 offen{sc}")
        a.e(f"buffer_store_dwordx4 v[{U+4}:{U+7}], v5, s[{SWS}:{SWS+3}], s66 offen offset:1024{sc}")

def gen_up(a, L, idreg, st=None, sc="", hook=None):
    setprio(a, 0)
    lane_setup(a)
    a.e(f"s_and_b32 s61, s{idreg}, 7")
    a.e("s_lshl_b32 s61, s61, 1")
    a.e(f"s_lshr_b32 s62, s{idreg}, 3")
    a.e("s_and_b32 s63, s62, 1")
    a.e("s_add_u32 s61, s61, s63")
    a.e(f"s_lshr_b32 s59, s{idreg}, 4")
    a.e("s_bitcmp1_b32 s60, 0")
    a.e(f"s_cselect_b32 s40, s{P_WU}, s{P_WG}")
    a.e(f"s_cselect_b32 s41, s{P_WU+1}, s{P_WG+1}")
    a.e(f"s_mov_b32 s42, {512 * 2752}")
    a.e("s_mov_b32 s43, 0x20000")
    srd(a, 48, P_WS, WS_USED)
    srd(a, 44, P_AX, 2048 * 1024)
    a.e("s_cmp_lt_u32 s59, 11")
    a.e(f"s_cbranch_scc0 {L}_up2")
    a.e("s_mul_i32 s62, s59, 3")
    gen_up_body(a, L + "_u3", 3, st, sc, hook)
    a.e(f"s_branch {L}_updone")
    a.flush_hist()
    a.label(f"{L}_up2")
    a.e("s_lshl_b32 s62, s59, 1")
    a.e("s_add_u32 s62, s62, 11")
    gen_up_body(a, L + "_u2", 2, None, sc, hook)
    a.label(f"{L}_updone")
    a.flush_hist()

def gen_up_kernel(a, label):
    kernel_head(a, label)
    a.e("s_cmp_ge_u32 s2, 0x100")
    a.e(f"s_cbranch_scc1 {label}_end")
    st = Stamper(a); st.real(76); st.stamp()
    load_ptrs(a)
    a.e("s_waitcnt lgkmcnt(0)")
    gen_up(a, label, 2, st)
    if STAMPS:
        a.e("s_waitcnt vmcnt(0)")
        st.stamp(); st.real(94); st.dump(48, 2, 60, 2, vtmp=14, name=label)
    a.label(f"{label}_end")
    a.e("s_endpgm")
    return kernel_desc(label, 176)

def gen_splitk(a, L, mode, idreg, st=None, sc_ld="", sc_st="", wait_fn=None, tile_fn=None):
    vm = VM()
    SW, SWS, SA, SO = 40, 48, 44, 52
    down = mode == 'down'
    nfb = 86 if down else 32
    nk = 22 if down else 8
    if tile_fn:
        tile_fn()
    else:
        a.e(f"s_and_b32 s61, s{idreg}, 7")
        a.e("s_lshl_b32 s61, s61, 2")
        a.e(f"s_lshr_b32 s62, s{idreg}, 3")
        a.e("s_and_b32 s62, s62, 3")
        a.e("s_add_u32 s61, s61, s62")
        a.e(f"s_lshr_b32 s62, s{idreg}, 5")
    srd(a, SWS, P_WS, WS_USED)
    if down:
        srd(a, SW, P_WD, 1376 * 1024)
        a.e("s_mul_i32 s63, s60, 22")
        a.e("s_cmp_eq_u32 s60, 3")
        a.e("s_cselect_b32 s64, 1, 0")
        a.e("s_sub_u32 s63, s63, s64")
    else:
        srd(a, SW, P_WO, 512 * 1024)
        srd(a, SO, P_OUT, 2048 * 1024)
        a.e("s_lshl_b32 s63, s60, 3")
    return_ = None
    a.e(f"s_mul_i32 s64, s61, {2 * nfb}")
    a.e("s_add_u32 s64, s64, s63")
    a.e("s_lshl_b32 s64, s64, 10")
    a.e(f"s_add_u32 s64, s64, {HF if down else OF}")
    a.e(f"s_add_u32 s65, s64, {nfb * 1024}")
    a.e("s_lshl_b32 s66, s63, 14")
    a.e("s_lshl_b32 s67, s62, 7")
    a.e("s_add_u32 s66, s66, s67")
    a.e("s_lshl_b32 s67, s60, 14")
    a.e("v_lshrrev_b32 v6, 3, v1")
    a.e("v_and_b32 v7, 7, v1")
    a.e("v_lshrrev_b32 v8, 1, v6")
    a.e("v_and_b32 v8, 1, v8")
    a.e("v_lshlrev_b32 v8, 2, v8")
    a.e("v_xor_b32 v7, v7, v8")
    a.e("v_lshlrev_b32 v7, 4, v7")
    a.e("v_lshlrev_b32 v6, 10, v6")
    a.e("v_add_u32 v8, v6, v7")
    ACC, HR, WF, BPR = 16, 80, 144, 160
    NR = 8
    def kclamp(kk):
        return kk
    def issue(kk, parts='wh'):
        sl = kk % NR
        last_opt = down and kk == nk - 1
        if last_opt:
            a.e("s_cmp_ge_u32 s60, 2")
            a.e(f"s_cselect_b32 s69, {(kk - 1)}, {kk}")
            a.e("s_lshl_b32 s70, s69, 10")
            a.e("s_lshl_b32 s69, s69, 14")
        if 'w' in parts:
            for i in range(2):
                a.e(f"s_add_u32 m0, s67, {sl * 2048 + i * 1024}")
                if last_opt:
                    a.e(f"s_add_u32 s68, s66, s69")
                    if i: a.e("s_add_u32 s68, s68, 8192")
                else:
                    a.e(f"s_add_u32 s68, s66, {kk * 16384 + i * 8192}")
                a.e(f"buffer_load_dwordx4 v8, s[{SW}:{SW+3}], s68 offen lds"); vm.issue(f'k{kk}')
        if 'h' in parts:
            for j, sb in enumerate((64, 65)):
                r = HR + sl * 8 + j * 4
                if last_opt: a.e(f"s_add_u32 s68, s{sb}, s70")
                else: a.e(f"s_add_u32 s68, s{sb}, {kk * 1024}")
                a.e(f"buffer_load_dwordx4 v[{r}:{r+3}], v5, s[{SWS}:{SWS+3}], s68 offen{sc_ld}"); vm.issue(f'k{kk}')
    if not down:
        a.e("s_and_b32 s71, s60, 1")
        a.e("s_lshr_b32 s72, s60, 1")
        a.e("s_lshl_b32 s73, s61, 1")
        a.e("s_add_u32 s73, s73, s71")
        a.e("s_lshl_b32 s74, s62, 1")
        a.e("s_add_u32 s74, s74, s72")
        a.e("s_lshl_b32 s75, s73, 4")
        a.e("s_add_u32 s75, s75, s74")
        a.e("s_lshl_b32 s75, s75, 12")
        a.e(f"s_add_u32 s75, s75, {BP}")
    if wait_fn:
        for kk in range(min(NR, nk)): issue(kk, 'w')
        wait_fn()
        for kk in range(min(NR, nk)): issue(kk, 'h')
    else:
        for kk in range(min(NR, nk)): issue(kk)
    if not down:
        for q in range(4):
            a.e(f"buffer_load_dwordx4 v[{BPR+4*q}:{BPR+4*q+3}], v5, s[{SWS}:{SWS+3}], s75 offen offset:{1024*q}{sc_ld}"); vm.issue('bp')
        a.e("v_lshlrev_b32 v13, 2, v3")
        a.e("s_lshl_b32 s68, s73, 7")
        a.e(f"s_add_u32 s68, s68, {GG}")
        a.e(f"buffer_load_dword v13, v13, s[{SWS}:{SWS+3}], s68 offen{sc_ld}"); vm.issue('bp')
    a.e("v_lshrrev_b32 v6, 4, v1")
    a.e("v_and_b32 v7, 15, v1")
    a.e("v_lshrrev_b32 v9, 2, v7")
    a.e("v_and_b32 v10, 3, v7")
    a.e("v_lshrrev_b32 v11, 1, v6")
    a.e("v_lshlrev_b32 v11, 2, v11")
    a.e("v_add_u32 v11, v11, v9")
    a.e("v_lshlrev_b32 v11, 7, v11")
    a.e("v_and_b32 v12, 1, v10")
    a.e("v_lshlrev_b32 v12, 5, v12")
    a.e("v_add_u32 v11, v11, v12")
    a.e("v_and_b32 v12, 1, v6")
    a.e("v_lshlrev_b32 v12, 4, v12")
    a.e("v_add_u32 v11, v11, v12")
    a.e("v_lshrrev_b32 v12, 1, v10")
    a.e("v_lshlrev_b32 v12, 3, v12")
    a.e("v_add_u32 v11, v11, v12")
    a.e("v_lshrrev_b32 v12, 1, v9")
    a.e("v_lshlrev_b32 v12, 6, v12")
    a.e("v_add_u32 v11, v11, v12")
    a.e("v_add_u32 v11, s67, v11")
    a.e("v_xor_b32 v12, 64, v11")
    for r in range(64): a.e(f"v_mov_b32 v{ACC + r}, 0")
    def reads(kk):
        sl = kk % NR
        f = WF + 8 * (kk & 1)
        for t in range(2):
            a.e(f"ds_read_b64_tr_b16 v[{f+4*t}:{f+4*t+1}], v{11+t} offset:{sl * 2048}")
            a.e(f"ds_read_b64_tr_b16 v[{f+4*t+2}:{f+4*t+3}], v{11+t} offset:{sl * 2048 + 1024}")
    if st: st.stamp()
    setprio(a, 1)
    a.e(f"s_waitcnt vmcnt({vm.wait_for('k0')})")
    if st: st.stamp()
    reads(0)
    for kk in range(nk):
        if kk + 1 < nk:
            a.e(f"s_waitcnt vmcnt({vm.wait_for(f'k{kk+1}')})")
            reads(kk + 1)
            a.e("s_waitcnt lgkmcnt(4)")
        else:
            a.e("s_waitcnt lgkmcnt(0)")
        f = WF + 8 * (kk & 1)
        h = HR + (kk % NR) * 8
        opt = down and kk == nk - 1
        if opt:
            a.e("s_cmp_ge_u32 s60, 2")
            a.e(f"s_cbranch_scc1 {L}_skiplast")
        for t in range(2):
            for j in range(2):
                A = ACC + (t * 2 + j) * 16
                a.e(f"v_mfma_f32_32x32x16_bf16 v[{A}:{A+15}], v[{f+4*t}:{f+4*t+3}], v[{h+4*j}:{h+4*j+3}], v[{A}:{A+15}]")
        if opt:
            a.label(f"{L}_skiplast")
        if kk + NR < nk: issue(kk + NR)
    if st: st.stamp()
    setprio(a, 2)
    a.e("s_nop 7"); a.e("s_nop 7")
    a.e("s_barrier")
    a.e("s_lshl_b32 s68, s60, 12")
    a.e("v_add_u32 v6, s68, v5")
    for i in range(4):
        for q in range(4):
            r = ACC + i * 16 + q * 4
            a.e(f"ds_write_b128 v6, v[{r}:{r+3}] offset:{i * 16384 + q * 1024}")
    a.e("s_waitcnt lgkmcnt(0)")
    a.e("s_barrier")
    a.e("s_lshl_b32 s68, s60, 14")
    a.e("v_add_u32 v6, s68, v5")
    for s in range(4):
        for q in range(4):
            r = ACC + s * 16 + q * 4
            a.e(f"ds_read_b128 v[{r}:{r+3}], v6 offset:{s * 4096 + q * 1024}")
    a.e("s_waitcnt lgkmcnt(8)")
    for r in range(16): a.e(f"v_add_f32 v{ACC + r}, v{ACC + r}, v{ACC + 16 + r}")
    a.e("s_waitcnt lgkmcnt(0)")
    for r in range(16): a.e(f"v_add_f32 v{ACC + 32 + r}, v{ACC + 32 + r}, v{ACC + 48 + r}")
    for r in range(16): a.e(f"v_add_f32 v{ACC + r}, v{ACC + r}, v{ACC + 32 + r}")
    if down:
        a.e("s_and_b32 s71, s60, 1")
        a.e("s_lshr_b32 s72, s60, 1")
        a.e("s_lshl_b32 s73, s61, 1")
        a.e("s_add_u32 s73, s73, s71")
        a.e("s_lshl_b32 s74, s62, 1")
        a.e("s_add_u32 s74, s74, s72")
        a.e("s_lshl_b32 s75, s73, 4")
        a.e("s_add_u32 s75, s75, s74")
        a.e("s_lshl_b32 s75, s75, 12")
        a.e(f"s_add_u32 s75, s75, {BP}")
        for q in range(4):
            a.e(f"buffer_store_dwordx4 v[{ACC+4*q}:{ACC+4*q+3}], v5, s[{SWS}:{SWS+3}], s75 offen offset:{1024*q}{sc_st}")
    else:
        a.e(f"s_waitcnt vmcnt({vm.wait_for('bp')})")
        a.e("v_sub_f32 v13, 1.0, v13")
        for r in range(16): a.e(f"v_fmac_f32 v{ACC + r}, v13, v{BPR + r}")
        for p in range(8): a.e(f"v_cvt_pk_bf16_f32 v{ACC + 16 + p}, v{ACC + 2 * p}, v{ACC + 2 * p + 1}")
        a.e("v_lshlrev_b32 v6, 10, v3")
        a.e("v_lshlrev_b32 v7, 5, v4")
        a.e("v_add_u32 v6, v6, v7")
        a.e("s_lshl_b32 s73, s73, 15")
        a.e("s_lshl_b32 s74, s74, 6")
        a.e("s_add_u32 s73, s73, s74")
        a.e(f"buffer_store_dwordx4 v[{ACC+16}:{ACC+19}], v6, s[{SO}:{SO+3}], s73 offen")
        a.e(f"buffer_store_dwordx4 v[{ACC+20}:{ACC+23}], v6, s[{SO}:{SO+3}], s73 offen offset:16")

def gen_splitk_kernel(mode, kidx):
    def fn(a, label):
        kernel_head(a, label)
        a.e("s_cmp_ge_u32 s2, 0x100")
        a.e(f"s_cbranch_scc1 {label}_end")
        st = Stamper(a); st.real(76); st.stamp()
        load_ptrs(a)
        lane_setup(a)
        a.e("s_waitcnt lgkmcnt(0)")
        gen_splitk(a, label, mode, 2, st)
        if STAMPS:
            a.e("s_waitcnt vmcnt(0)")
            st.stamp(); st.real(94); st.dump(48, 2, 60, kidx, vtmp=14, name=label)
        a.label(f"{label}_end")
        a.e("s_endpgm")
        return kernel_desc(label, 176)
    return fn
```

```python
from common import *
import k2b, k2g, os

SPIN_MAX = 1 << 16

def signal(a, L, cnt_off_sgpr, SWS=48, gate=None):
    a.e("s_waitcnt vmcnt(0)")
    a.e("s_barrier")
    a.e("s_cmp_lg_u32 s60, 0")
    a.e(f"s_cbranch_scc1 {L}_nosig")
    if gate:
        vf, sd = gate
        a.e("s_mov_b32 s58, 0")
        a.label(f"{L}_gate")
        a.e(f"v_readfirstlane_b32 s57, v{vf}")
        a.e("s_cmp_lg_u32 s57, 0")
        a.e(f"s_cbranch_scc1 {L}_gateok")
        a.e("v_mov_b32 v6, 0")
        a.e(f"buffer_load_dword v{vf}, v6, s[{sd}:{sd+3}], 0 offen sc0 sc1")
        a.e("s_waitcnt vmcnt(0)")
        a.e("s_add_u32 s58, s58, 1")
        a.e(f"s_cmp_lt_u32 s58, {SPIN_MAX}")
        a.e(f"s_cbranch_scc1 {L}_gate")
        a.label(f"{L}_gateok")
        a.flush_hist()
    a.e("v_mov_b32 v6, 0")
    a.e("v_mov_b32 v7, 1")
    a.e("s_mov_b64 exec, 1")
    a.e(f"buffer_atomic_add v7, v6, s[{SWS}:{SWS+3}], s{cnt_off_sgpr} offen sc1")
    a.e("s_mov_b64 exec, -1")
    a.label(f"{L}_nosig")
    a.flush_hist()

def wait_cnt(a, L, cnt_off_sgpr, target, SWS=48, two=False):
    a.e("s_cmp_lg_u32 s60, 0")
    a.e(f"s_cbranch_scc1 {L}_wdone")
    a.e("v_mov_b32 v6, 0")
    a.e("s_mov_b32 s58, 0")
    a.label(f"{L}_poll")
    a.e(f"buffer_load_dword v7, v6, s[{SWS}:{SWS+3}], s{cnt_off_sgpr} offen sc0 sc1")
    if two: a.e(f"buffer_load_dword v9, v6, s[{SWS}:{SWS+3}], s{cnt_off_sgpr} offen offset:{two} sc0 sc1")
    a.e("s_waitcnt vmcnt(0)")
    if two: a.e("v_min_u32 v7, v7, v9")
    a.e("v_readfirstlane_b32 s57, v7")
    a.e(f"s_cmp_ge_u32 s57, {target}")
    a.e(f"s_cbranch_scc1 {L}_wdone")
    a.e("s_add_u32 s58, s58, 1")
    a.e(f"s_cmp_lt_u32 s58, {SPIN_MAX}")
    a.e(f"s_cbranch_scc1 {L}_poll")
    a.label(f"{L}_wdone")
    a.flush_hist()
    a.e("s_barrier")

def gen_k2(a, label):
    kernel_head(a, label)
    a.e("s_cmp_ge_u32 s2, 0x200")
    a.e(f"s_cbranch_scc1 {label}_end")
    load_ptrs(a)
    st = Stamper(a); st.real(76); st.stamp()
    a.e("s_cmp_ge_u32 s2, 0x100")
    a.e(f"s_cbranch_scc1 {label}_G")
    a.e("s_waitcnt lgkmcnt(0)")
    k2b.gen_attn2(a, label + "_A", 2, st, prio=int(os.environ.get('APRIO', '2')))
    if STAMPS:
        a.e("s_waitcnt vmcnt(0)")
        st.stamp(); st.real(94); st.dump(48, 2, 60, 1, vtmp=20, name=label)
    a.e("s_endpgm")
    a.flush_hist()
    a.label(f"{label}_G")
    st2 = Stamper(a); st2.n = 1
    a.e("s_sub_u32 s56, s2, 0x100")
    if os.environ.get('GPRIO'): a.e(f"s_setprio {os.environ['GPRIO']}")
    a.e("s_waitcnt lgkmcnt(0)")
    k2g.gen_up(a, label + "_U", 56, st2, sc=" sc0 sc1")
    a.e("s_lshl_b32 s59, s61, 6")
    a.e(f"s_add_u32 s59, s59, {CNT}")
    signal(a, label + "_S", 59)
    st2.stamp()
    a.e("s_and_b32 s61, s56, 7")
    a.e("s_lshl_b32 s61, s61, 2")
    a.e("s_lshr_b32 s62, s56, 3")
    a.e("s_and_b32 s62, s62, 3")
    a.e("s_add_u32 s61, s61, s62")
    a.e("s_lshr_b32 s61, s61, 1")
    a.e("s_lshl_b32 s59, s61, 6")
    a.e(f"s_add_u32 s59, s59, {CNT}")
    wait_cnt(a, label + "_W", 59, 16)
    st2.stamp()
    k2g.gen_splitk(a, label + "_D", 'down', 56, None, sc_ld=" sc0 sc1")
    if STAMPS:
        a.e("s_waitcnt vmcnt(0)")
        st2.stamp(); st2.real(94); st2.dump(48, 2, 60, 1, vtmp=14, name=label + "_g")
    a.label(f"{label}_end")
    a.e("s_endpgm")
    return kernel_desc(label, 176)

CU, CA, CB = CNT, CNT + 2048, CNT + 3072

def gen_k2f(a, label):
    import k2g
    kernel_head(a, label)
    a.e("s_cmp_ge_u32 s2, 0x200")
    a.e(f"s_cbranch_scc1 {label}_end")
    load_ptrs(a)
    st = Stamper(a); st.real(76); st.stamp()
    a.e("s_cmp_ge_u32 s2, 0x100")
    a.e(f"s_cbranch_scc1 {label}_G")
    a.e("s_waitcnt lgkmcnt(0)")
    k2b.gen_attn2(a, label + "_A", 2, st, prio=int(os.environ.get('APRIO', '1')), sc=" sc0 sc1", mid=False)
    a.e("s_lshl_b32 s59, s62, 7")
    a.e(f"s_add_u32 s59, s59, {CA}")
    signal(a, label + "_SA", 59)
    if st: st.stamp()
    a.e("s_mov_b32 s54, s61")
    a.e("s_mov_b32 s55, s62")
    k2g.lane_setup(a)
    def tile():
        a.e("s_lshl_b32 s61, s55, 2")
        a.e("s_lshr_b32 s62, s54, 3")
        a.e("s_add_u32 s61, s61, s62")
        a.e("s_and_b32 s62, s54, 7")
    def waitf():
        wait_cnt(a, label + "_WA", 59, 32, two=CB - CA)
        if st: st.stamp()
    k2g.gen_splitk(a, label + "_O", 'wo', 2, None, sc_ld=" sc0 sc1", wait_fn=waitf, tile_fn=tile)
    if STAMPS:
        a.e("s_waitcnt vmcnt(0)")
        st.stamp(); st.real(94); st.dump(48, 2, 60, 1, vtmp=14, name=label)
    a.e("s_endpgm")
    a.flush_hist()
    a.label(f"{label}_G")
    st2 = Stamper(a); st2.n = 1
    a.e("s_sub_u32 s56, s2, 0x100")
    a.e("s_waitcnt lgkmcnt(0)")
    k2g.gen_up(a, label + "_U", 56, st2, sc=" sc0 sc1")
    a.e("s_lshl_b32 s59, s61, 7")
    a.e(f"s_add_u32 s59, s59, {CU}")
    signal(a, label + "_S", 59)
    st2.stamp()
    a.e("s_and_b32 s61, s56, 7")
    a.e("s_lshl_b32 s61, s61, 2")
    a.e("s_lshr_b32 s62, s56, 3")
    a.e("s_and_b32 s62, s62, 3")
    a.e("s_add_u32 s61, s61, s62")
    a.e("s_lshr_b32 s55, s61, 2")
    a.e("s_lshr_b32 s61, s61, 1")
    a.e("s_lshl_b32 s59, s61, 7")
    a.e(f"s_add_u32 s59, s59, {CU}")
    def waitg():
        wait_cnt(a, label + "_W", 59, 16)
        st2.stamp()
    k2g.gen_splitk(a, label + "_D", 'down', 56, None, sc_ld=" sc0 sc1", sc_st=" sc0 sc1", wait_fn=waitg)
    a.e("s_lshl_b32 s59, s55, 7")
    a.e(f"s_add_u32 s59, s59, {CB}")
    signal(a, label + "_SB", 59)
    if STAMPS:
        st2.stamp(); st2.stamp(); st2.real(94); st2.dump(48, 2, 60, 1, vtmp=14, name=label + "_g")
    a.label(f"{label}_end")
    a.e("s_endpgm")
    return kernel_desc(label, 176)

CQ = CNT + 4096
def gen_fused(a, label):
    import k2g, k1b
    SCL = os.environ.get('SCL', ' sc0 sc1')
    kernel_head(a, label)
    a.e("s_cmp_ge_u32 s2, 0x200")
    a.e(f"s_cbranch_scc1 {label}_end")
    load_ptrs(a)
    a.e("s_load_dwordx2 s[36:37], s[0:1], 72")
    st = Stamper(a); st.real(76); st.stamp()
    SD = 96
    a.e("s_cmp_ge_u32 s2, 0x100")
    a.e(f"s_cbranch_scc1 {label}_G")
    a.e("s_waitcnt lgkmcnt(0)")
    a.e("s_setprio 2")
    srd(a, SD, 36, 256)
    def flag_load(vf):
        def h(s):
            if s == 14:
                a.e(f"v_mov_b32 v{vf}, 0")
                a.e(f"buffer_load_dword v{vf}, v{vf}, s[{SD}:{SD+3}], 0 offen sc0 sc1")
        return h
    k1b.gen_qkv(a, label + "_Q", 2, None, sc=" sc0 sc1", prefetch=False, hook=flag_load(156))
    a.e("s_lshl_b32 s59, s62, 7")
    a.e(f"s_add_u32 s59, s59, {CQ}")
    signal(a, label + "_SQ", 59, gate=(156, SD))
    st.stamp()
    a.e("s_and_b32 s59, s2, 7")
    a.e("s_lshl_b32 s59, s59, 7")
    a.e(f"s_add_u32 s59, s59, {CQ}")
    wait_cnt(a, label + "_WQ", 59, 32)
    st.stamp()
    k2b.gen_attn2(a, label + "_A", 2, None, prio=int(os.environ.get('APRIO', '1')), sc=" sc0 sc1", mid=False, scl=SCL)
    st.stamp()
    a.e("s_lshl_b32 s59, s62, 7")
    a.e(f"s_add_u32 s59, s59, {CA}")
    signal(a, label + "_SA", 59)
    st.stamp()
    a.e("s_mov_b32 s54, s61")
    a.e("s_mov_b32 s55, s62")
    k2g.lane_setup(a)
    def tile():
        a.e("s_lshl_b32 s61, s55, 2")
        a.e("s_lshr_b32 s62, s54, 3")
        a.e("s_add_u32 s61, s61, s62")
        a.e("s_and_b32 s62, s54, 7")
    def waitf():
        wait_cnt(a, label + "_WA", 59, 32, two=CB - CA)
        st.stamp()
    k2g.gen_splitk(a, label + "_O", 'wo', 2, None, sc_ld=" sc0 sc1", wait_fn=waitf, tile_fn=tile)
    if STAMPS:
        a.e("s_waitcnt vmcnt(0)")
        st.stamp(); st.real(94); st.dump(48, 2, 60, 0, vtmp=14, name=label)
    a.e("s_endpgm")
    a.flush_hist()
    a.label(f"{label}_G")
    st2 = Stamper(a); st2.n = 1
    a.e("s_sub_u32 s56, s2, 0x100")
    a.e("s_waitcnt lgkmcnt(0)")
    srd(a, SD, 36, 256)
    a.e("s_cmp_lg_u32 s56, 0")
    a.e(f"s_cbranch_scc1 {label}_noinit")
    a.e("v_cmp_gt_u32 vcc, 64, v0")
    a.e("s_cbranch_vccz " + f"{label}_noinit")
    srd(a, 48, P_WS, WS_USED)
    a.e("v_lshlrev_b32 v7, 4, v0")
    for r in range(4): a.e(f"v_mov_b32 v{8 + r}, 0")
    a.e(f"s_mov_b32 s59, {CNT}")
    for i in range(4): a.e(f"buffer_store_dwordx4 v[8:11], v7, s[48:51], s59 offen offset:{1024 * i} sc0 sc1")
    a.e(f"s_mov_b32 s59, {CNT + 4096}")
    a.e(f"buffer_store_dwordx4 v[8:11], v7, s[48:51], s59 offen sc0 sc1")
    a.e("s_waitcnt vmcnt(0)")
    a.e("v_mov_b32 v8, 1")
    a.e("v_mov_b32 v7, 0")
    a.e("s_mov_b64 exec, 1")
    a.e(f"buffer_store_dword v8, v7, s[{SD}:{SD+3}], 0 offen sc0 sc1")
    a.e("s_mov_b64 exec, -1")
    a.label(f"{label}_noinit")
    a.flush_hist()
    def ghook(s):
        if s == 13:
            a.e("s_lshl_b32 s14, s56, 2")
            a.e("s_add_u32 s14, s14, s60")
            a.e("s_lshl_b32 s14, s14, 10")
            a.e("s_add_u32 s15, s14, 0x100000")
            srd(a, 8, P_WD, 1376 * 1024)
            a.e("buffer_load_dwordx4 v[172:175], v5, s[8:11], s14 offen")
            a.e("buffer_load_dwordx4 v[172:175], v5, s[8:11], s15 offen")
            srd(a, 8, P_WO, 512 * 1024)
            a.e("buffer_load_dwordx4 v[172:175], v5, s[8:11], s14 offen")
        if s == 14:
            a.e("v_mov_b32 v13, 0")
            a.e(f"buffer_load_dword v13, v13, s[{SD}:{SD+3}], 0 offen sc0 sc1")
    k2g.gen_up(a, label + "_U", 56, st2, sc=" sc0 sc1", hook=ghook)
    a.e("s_lshl_b32 s59, s61, 7")
    a.e(f"s_add_u32 s59, s59, {CU}")
    signal(a, label + "_S", 59, gate=(13, SD))
    st2.stamp()
    a.e("s_and_b32 s61, s56, 7")
    a.e("s_lshl_b32 s61, s61, 2")
    a.e("s_lshr_b32 s62, s56, 3")
    a.e("s_and_b32 s62, s62, 3")
    a.e("s_add_u32 s61, s61, s62")
    a.e("s_lshr_b32 s55, s61, 2")
    a.e("s_lshr_b32 s61, s61, 1")
    a.e("s_lshl_b32 s59, s61, 7")
    a.e(f"s_add_u32 s59, s59, {CU}")
    def waitg():
        wait_cnt(a, label + "_W", 59, 16)
        st2.stamp()
    k2g.gen_splitk(a, label + "_D", 'down', 56, None, sc_ld=" sc0 sc1", sc_st=" sc0 sc1", wait_fn=waitg)
    a.e("s_lshl_b32 s59, s55, 7")
    a.e(f"s_add_u32 s59, s59, {CB}")
    signal(a, label + "_SB", 59)
    if STAMPS:
        st2.stamp(); st2.stamp(); st2.real(94); st2.dump(48, 2, 60, 0, vtmp=14, name=label + "_g")
    a.label(f"{label}_end")
    a.e("s_endpgm")
    return kernel_desc(label, 176, sgpr=100)
```

```python
import k1, k1b, k2a, k2g, k2b, k2m, os
def stages(cfg):
    if cfg == 'simple':
        return [("k1_qkv_kernel", 256, 256, 163840, k1.gen_k1),
                ("k2_attn_kernel", 512, 256, 81920, k2a.gen_attn),
                ("k3_up_kernel", 256, 256, 81920, k2g.gen_up_kernel),
                ("k4_down_kernel", 256, 256, 65536, k2g.gen_splitk_kernel('down', 3)),
                ("k5_wo_kernel", 256, 256, 65536, k2g.gen_splitk_kernel('wo', 4))]
    if cfg == 'simple2':
        return [("k1_qkv_kernel", 256, 256, 163840, k1.gen_k1),
                ("k2_attn_kernel", 256, 256, 81920, k2b.gen_attn2_kernel),
                ("k3_up_kernel", 256, 256, 81920, k2g.gen_up_kernel),
                ("k4_down_kernel", 256, 256, 65536, k2g.gen_splitk_kernel('down', 3)),
                ("k5_wo_kernel", 256, 256, 65536, k2g.gen_splitk_kernel('wo', 4))]
    if cfg == 'm3':
        return [("k1_qkv_kernel", 256, 256, 163840, k1.gen_k1),
                ("k2_mix_kernel", 512, 256, 81920, k2m.gen_k2),
                ("k5_wo_kernel", 256, 256, 65536, k2g.gen_splitk_kernel('wo', 2))]
    if cfg == 'm3b':
        return [("k1_qkv_kernel", 256, 256, 81920, k1b.gen_k1b),
                ("k2_mix_kernel", 512, 256, 81920, k2m.gen_k2),
                ("k5_wo_kernel", 256, 256, 65536, k2g.gen_splitk_kernel('wo', 2))]
    if cfg == 'f2':
        return [("k1_qkv_kernel", 256, 256, 81920, k1b.gen_k1b),
                ("k2_mix_kernel", 512, 256, 81920, k2m.gen_k2f)]
    if cfg == 'f1':
        return [("gated_mix__softmax_full_mha__swiglu_ffn__prompt_kernel", 512, 256, 81920, k2m.gen_fused)]
    raise ValueError(cfg)
```

```python
from common import *
import os
PRIO = os.environ.get('GP', '')
def setprio(a, i):
    if PRIO: a.e(f's_setprio {PRIO[i]}')
NLOG2E = -1.4426950408889634

def lane_setup(a):
    a.e("v_and_b32 v1, 63, v0")
    a.e("v_lshrrev_b32 v2, 6, v0")
    a.e("v_readfirstlane_b32 s60, v2")
    a.e("v_and_b32 v3, 31, v1")
    a.e("v_lshrrev_b32 v4, 5, v1")
    a.e("v_lshlrev_b32 v5, 4, v1")

def gen_up_body(a, L, nt, st=None, sc="", hook=None):
    vm = VM()
    SW, SX, SWS = 40, 44, 48
    RB = nt * 64
    BLK = 16 * RB
    STG = 4 * BLK
    NSTG = 4
    XB = 49152
    lpr = RB // 16
    a.e("s_lshl_b32 s63, s61, 2")
    a.e("s_add_u32 s63, s63, s60")
    a.e("v_lshrrev_b32 v6, 3, v1")
    a.e("s_lshl_b32 s68, s63, 5")
    a.e("v_add_u32 v6, s68, v6")
    a.e("v_lshlrev_b32 v6, 10, v6")
    a.e("v_and_b32 v7, 7, v1")
    a.e("v_lshrrev_b32 v11, 4, v1")
    a.e("v_xor_b32 v7, v7, v11")
    a.e("v_xor_b32 v12, 4, v7")
    a.e("v_lshlrev_b32 v7, 4, v7")
    a.e("v_lshlrev_b32 v12, 4, v12")
    a.e("v_add_u32 v14, v6, v7")
    a.e("v_add_u32 v15, v6, v12")
    a.e("v_add_u32 v15, 0x2000, v15")
    a.e("s_lshl_b32 s67, s60, 12")
    a.e(f"s_add_u32 s67, s67, {XB}")
    def issue_X(q):
        for b in range(4):
            a.e(f"s_add_u32 m0, s67, {(q % 2) * 16384 + b * 1024}")
            a.e(f"s_mov_b32 s66, {q * 128 + (b >> 1) * 16384}")
            a.e(f"buffer_load_dwordx4 v{14 + (b & 1)}, s[{SX}:{SX+3}], s66 offen lds"); vm.issue(f'X{q}')
    VD = 8
    for i in range(nt):
        a.e(f"v_add_u32 v6, {64 * i}, v1")
        if lpr == 8:
            a.e("v_lshrrev_b32 v7, 3, v6")
        else:
            a.e("v_mul_u32_u24 v7, 43691, v6")
            a.e("v_lshrrev_b32 v7, 19, v7")
        a.e(f"v_mul_u32_u24 v11, {lpr}, v7")
        a.e("v_sub_u32 v11, v6, v11")
        a.e("v_mul_u32_u24 v7, 2752, v7")
        a.e("v_lshlrev_b32 v11, 4, v11")
        a.e(f"v_add_u32 v{VD + i}, v7, v11")
    a.e("s_lshr_b32 s64, s60, 1")
    a.e(f"s_mul_i32 s64, s64, {16 * 2752}")
    a.e("s_lshl_b32 s65, s62, 6")
    a.e("s_add_u32 s64, s64, s65")
    a.e(f"s_mul_i32 s65, s60, {BLK}")
    def issue_W(s):
        for i in range(nt):
            a.e(f"s_add_u32 m0, s65, {(s % NSTG) * STG + i * 1024}")
            a.e(f"s_add_u32 s66, s64, {s * 32 * 2752}")
            a.e(f"buffer_load_dwordx4 v{VD + i}, s[{SW}:{SW+3}], s66 offen lds"); vm.issue(f'W{s}')
    issue_W(0); issue_X(0); issue_W(1); issue_W(2); issue_X(1); issue_W(3)
    a.e("v_lshrrev_b32 v6, 4, v1")
    a.e("v_lshrrev_b32 v7, 1, v6")
    a.e("v_lshlrev_b32 v7, 3, v7")
    a.e("v_and_b32 v11, 15, v1")
    a.e("v_lshrrev_b32 v12, 2, v11")
    a.e("v_add_u32 v7, v7, v12")
    a.e(f"v_mul_u32_u24 v7, {RB}, v7")
    a.e("v_and_b32 v12, 1, v6")
    a.e("v_lshlrev_b32 v12, 5, v12")
    a.e("v_add_u32 v7, v7, v12")
    a.e("v_and_b32 v12, 3, v11")
    a.e("v_lshlrev_b32 v12, 3, v12")
    a.e("v_add_u32 v7, v7, v12")
    XA = 168
    a.e("v_lshrrev_b32 v11, 1, v3")
    a.e("v_and_b32 v11, 7, v11")
    a.e("v_lshlrev_b32 v12, 7, v3")
    a.e("v_add_u32 v12, s67, v12")
    for t in range(4):
        a.e(f"v_add_u32 v6, {2*t}, v4")
        a.e("v_xor_b32 v6, v6, v11")
        a.e("v_lshlrev_b32 v6, 4, v6")
        a.e(f"v_add_u32 v{XA+t}, v12, v6")
    ACC = 16
    for r in range(32 * nt): a.e(f"v_mov_b32 v{ACC + r}, 0")
    FR = 112
    def reads(kk):
        s, k2 = kk >> 1, kk & 1
        q, t4 = kk >> 2, kk & 3
        f = FR + 28 * (kk & 1)
        a.e(f"ds_read_b128 v[{f}:{f+3}], v{XA+t4} offset:{(q % 2) * 16384}")
        for mat in range(2):
            for t in range(nt):
                o = (s % NSTG) * STG + (k2 * 2 + mat) * BLK + t * 64
                g = f + 4 + (mat * nt + t) * 4
                a.e(f"ds_read_b64_tr_b16 v[{g}:{g+1}], v7 offset:{o}")
                a.e(f"ds_read_b64_tr_b16 v[{g+2}:{g+3}], v7 offset:{o + 4 * RB}")
    def mfmas(kk):
        f = FR + 28 * (kk & 1)
        for mat in range(2):
            for t in range(nt):
                g = f + 4 + (mat * nt + t) * 4
                A = ACC + (mat * nt + t) * 16
                a.e(f"v_mfma_f32_32x32x16_bf16 v[{A}:{A+15}], v[{g}:{g+3}], v[{f}:{f+3}], v[{A}:{A+15}]")
    if st: st.stamp()
    setprio(a, 1)
    for s in range(16):
        tags = [f'W{s}'] + ([f'X{s >> 1}'] if s % 2 == 0 else [])
        a.e(f"s_waitcnt vmcnt({vm.wait_for(*tags)}) lgkmcnt(0)")
        a.e("s_barrier")
        reads(2 * s)
        if s > 0: mfmas(2 * s - 1)
        if s >= 1 and s + 3 < 16: issue_W(s + 3)
        if s >= 2 and s % 2 == 0 and (s - 2) // 2 + 2 < 8: issue_X((s - 2) // 2 + 2)
        if hook: hook(s, vm)
        a.e("s_waitcnt lgkmcnt(0)")
        reads(2 * s + 1)
        mfmas(2 * s)
    a.e("s_waitcnt lgkmcnt(0)")
    mfmas(31)
    if st: st.stamp()
    setprio(a, 2)
    T = FR
    for t in range(nt):
        G = ACC + t * 16; U = ACC + (nt + t) * 16
        for r in range(16): a.e(f"v_mul_f32 v{T + r}, {f32(NLOG2E)}, v{G + r}")
        for r in range(16): a.e(f"v_exp_f32 v{T + r}, v{T + r}")
        for r in range(16): a.e(f"v_mul_f32 v{G + r}, v{G + r}, v{U + r}")
        for r in range(16): a.e(f"v_add_f32 v{T + r}, 1.0, v{T + r}")
        for r in range(16): a.e(f"v_rcp_f32 v{T + r}, v{T + r}")
        for r in range(16): a.e(f"v_mul_f32 v{G + r}, v{G + r}, v{T + r}")
        for p in range(8): a.e(f"v_cvt_pk_bf16_f32 v{U + p}, v{G + 2 * p}, v{G + 2 * p + 1}")
        if t == 0:
            a.e("s_mul_i32 s66, s63, 86")
            a.e("s_lshl_b32 s68, s62, 1")
            a.e("s_add_u32 s66, s66, s68")
            a.e("s_lshl_b32 s66, s66, 10")
            a.e(f"s_add_u32 s66, s66, {HF}")
        else:
            a.e("s_add_u32 s66, s66, 2048")
        a.e(f"buffer_store_dwordx4 v[{U}:{U+3}], v5, s[{SWS}:{SWS+3}], s66 offen{sc}")
        a.e(f"buffer_store_dwordx4 v[{U+4}:{U+7}], v5, s[{SWS}:{SWS+3}], s66 offen offset:1024{sc}")

def gen_up(a, L, idreg, st=None, sc="", hook=None):
    setprio(a, 0)
    lane_setup(a)
    a.e(f"s_and_b32 s61, s{idreg}, 7")
    a.e("s_lshl_b32 s61, s61, 1")
    a.e(f"s_lshr_b32 s62, s{idreg}, 3")
    a.e("s_and_b32 s63, s62, 1")
    a.e("s_add_u32 s61, s61, s63")
    a.e(f"s_lshr_b32 s59, s{idreg}, 4")
    a.e("s_bitcmp1_b32 s60, 0")
    a.e(f"s_cselect_b32 s40, s{P_WU}, s{P_WG}")
    a.e(f"s_cselect_b32 s41, s{P_WU+1}, s{P_WG+1}")
    a.e(f"s_mov_b32 s42, {512 * 2752}")
    a.e("s_mov_b32 s43, 0x20000")
    srd(a, 48, P_WS, WS_USED)
    srd(a, 44, P_AX, 2048 * 1024)
    a.e("s_cmp_lt_u32 s59, 11")
    a.e(f"s_cbranch_scc0 {L}_up2")
    a.e("s_mul_i32 s62, s59, 3")
    gen_up_body(a, L + "_u3", 3, st, sc, hook)
    a.e(f"s_branch {L}_updone")
    a.flush_hist()
    a.label(f"{L}_up2")
    a.e("s_lshl_b32 s62, s59, 1")
    a.e("s_add_u32 s62, s62, 11")
    gen_up_body(a, L + "_u2", 2, None, sc, hook)
    a.label(f"{L}_updone")
    a.flush_hist()

def gen_up_kernel(a, label):
    kernel_head(a, label)
    a.e("s_cmp_ge_u32 s2, 0x100")
    a.e(f"s_cbranch_scc1 {label}_end")
    st = Stamper(a); st.real(76); st.stamp()
    load_ptrs(a)
    a.e("s_waitcnt lgkmcnt(0)")
    gen_up(a, label, 2, st)
    if STAMPS:
        a.e("s_waitcnt vmcnt(0)")
        st.stamp(); st.real(94); st.dump(48, 2, 60, 2, vtmp=14, name=label)
    a.label(f"{label}_end")
    a.e("s_endpgm")
    return kernel_desc(label, 176)

def gen_splitk(a, L, mode, idreg, st=None, sc_ld="", sc_st="", wait_fn=None, tile_fn=None):
    vm = VM()
    SW, SWS, SA, SO = 40, 48, 44, 52
    down = mode == 'down'
    nfb = 86 if down else 32
    nk = 22 if down else 8
    if tile_fn:
        tile_fn()
    else:
        a.e(f"s_and_b32 s61, s{idreg}, 7")
        a.e("s_lshl_b32 s61, s61, 2")
        a.e(f"s_lshr_b32 s62, s{idreg}, 3")
        a.e("s_and_b32 s62, s62, 3")
        a.e("s_add_u32 s61, s61, s62")
        a.e(f"s_lshr_b32 s62, s{idreg}, 5")
    srd(a, SWS, P_WS, WS_USED)
    if down:
        srd(a, SW, P_WD, 1376 * 1024)
        a.e("s_mul_i32 s63, s60, 22")
        a.e("s_cmp_eq_u32 s60, 3")
        a.e("s_cselect_b32 s64, 1, 0")
        a.e("s_sub_u32 s63, s63, s64")
    else:
        srd(a, SW, P_WO, 512 * 1024)
        srd(a, SO, P_OUT, 2048 * 1024)
        a.e("s_lshl_b32 s63, s60, 3")
    return_ = None
    a.e(f"s_mul_i32 s64, s61, {2 * nfb}")
    a.e("s_add_u32 s64, s64, s63")
    a.e("s_lshl_b32 s64, s64, 10")
    a.e(f"s_add_u32 s64, s64, {HF if down else OF}")
    a.e(f"s_add_u32 s65, s64, {nfb * 1024}")
    a.e("s_lshl_b32 s66, s63, 14")
    a.e("s_lshl_b32 s67, s62, 7")
    a.e("s_add_u32 s66, s66, s67")
    a.e("s_lshl_b32 s67, s60, 14")
    a.e("v_lshrrev_b32 v6, 3, v1")
    a.e("v_and_b32 v7, 7, v1")
    a.e("v_lshrrev_b32 v8, 1, v6")
    a.e("v_and_b32 v8, 1, v8")
    a.e("v_lshlrev_b32 v8, 2, v8")
    a.e("v_xor_b32 v7, v7, v8")
    a.e("v_lshlrev_b32 v7, 4, v7")
    a.e("v_lshlrev_b32 v6, 10, v6")
    a.e("v_add_u32 v8, v6, v7")
    ACC, HR, WF, BPR = 16, 80, 144, 160
    NR = 8
    def kclamp(kk):
        return kk
    def issue(kk, parts='wh'):
        sl = kk % NR
        last_opt = down and kk == nk - 1
        if last_opt:
            a.e("s_cmp_ge_u32 s60, 2")
            a.e(f"s_cselect_b32 s69, {(kk - 1)}, {kk}")
            a.e("s_lshl_b32 s70, s69, 10")
            a.e("s_lshl_b32 s69, s69, 14")
        if 'w' in parts:
            for i in range(2):
                a.e(f"s_add_u32 m0, s67, {sl * 2048 + i * 1024}")
                if last_opt:
                    a.e(f"s_add_u32 s68, s66, s69")
                    if i: a.e("s_add_u32 s68, s68, 8192")
                else:
                    a.e(f"s_add_u32 s68, s66, {kk * 16384 + i * 8192}")
                a.e(f"buffer_load_dwordx4 v8, s[{SW}:{SW+3}], s68 offen lds"); vm.issue(f'k{kk}')
        if 'h' in parts:
            for j, sb in enumerate((64, 65)):
                r = HR + sl * 8 + j * 4
                if last_opt: a.e(f"s_add_u32 s68, s{sb}, s70")
                else: a.e(f"s_add_u32 s68, s{sb}, {kk * 1024}")
                a.e(f"buffer_load_dwordx4 v[{r}:{r+3}], v5, s[{SWS}:{SWS+3}], s68 offen{sc_ld}"); vm.issue(f'k{kk}')
    if not down:
        a.e("s_and_b32 s71, s60, 1")
        a.e("s_lshr_b32 s72, s60, 1")
        a.e("s_lshl_b32 s73, s61, 1")
        a.e("s_add_u32 s73, s73, s71")
        a.e("s_lshl_b32 s74, s62, 1")
        a.e("s_add_u32 s74, s74, s72")
        a.e("s_lshl_b32 s75, s73, 4")
        a.e("s_add_u32 s75, s75, s74")
        a.e("s_lshl_b32 s75, s75, 12")
        a.e(f"s_add_u32 s75, s75, {BP}")
    if wait_fn:
        for kk in range(min(NR, nk)): issue(kk, 'w')
        wait_fn()
        for kk in range(min(NR, nk)): issue(kk, 'h')
    else:
        for kk in range(min(NR, nk)): issue(kk)
    if not down:
        for q in range(4):
            a.e(f"buffer_load_dwordx4 v[{BPR+4*q}:{BPR+4*q+3}], v5, s[{SWS}:{SWS+3}], s75 offen offset:{1024*q}{sc_ld}"); vm.issue('bp')
        a.e("v_lshlrev_b32 v13, 2, v3")
        a.e("s_lshl_b32 s68, s73, 7")
        a.e(f"s_add_u32 s68, s68, {GG}")
        a.e(f"buffer_load_dword v13, v13, s[{SWS}:{SWS+3}], s68 offen{sc_ld}"); vm.issue('bp')
    a.e("v_lshrrev_b32 v6, 4, v1")
    a.e("v_and_b32 v7, 15, v1")
    a.e("v_lshrrev_b32 v9, 2, v7")
    a.e("v_and_b32 v10, 3, v7")
    a.e("v_lshrrev_b32 v11, 1, v6")
    a.e("v_lshlrev_b32 v11, 2, v11")
    a.e("v_add_u32 v11, v11, v9")
    a.e("v_lshlrev_b32 v11, 7, v11")
    a.e("v_and_b32 v12, 1, v10")
    a.e("v_lshlrev_b32 v12, 5, v12")
    a.e("v_add_u32 v11, v11, v12")
    a.e("v_and_b32 v12, 1, v6")
    a.e("v_lshlrev_b32 v12, 4, v12")
    a.e("v_add_u32 v11, v11, v12")
    a.e("v_lshrrev_b32 v12, 1, v10")
    a.e("v_lshlrev_b32 v12, 3, v12")
    a.e("v_add_u32 v11, v11, v12")
    a.e("v_lshrrev_b32 v12, 1, v9")
    a.e("v_lshlrev_b32 v12, 6, v12")
    a.e("v_add_u32 v11, v11, v12")
    a.e("v_add_u32 v11, s67, v11")
    a.e("v_xor_b32 v12, 64, v11")
    for r in range(64): a.e(f"v_mov_b32 v{ACC + r}, 0")
    def reads(kk):
        sl = kk % NR
        f = WF + 8 * (kk & 1)
        for t in range(2):
            a.e(f"ds_read_b64_tr_b16 v[{f+4*t}:{f+4*t+1}], v{11+t} offset:{sl * 2048}")
            a.e(f"ds_read_b64_tr_b16 v[{f+4*t+2}:{f+4*t+3}], v{11+t} offset:{sl * 2048 + 1024}")
    if st: st.stamp()
    setprio(a, 1)
    a.e(f"s_waitcnt vmcnt({vm.wait_for('k0')})")
    if st: st.stamp()
    reads(0)
    for kk in range(nk):
        if kk + 1 < nk:
            a.e(f"s_waitcnt vmcnt({vm.wait_for(f'k{kk+1}')})")
            reads(kk + 1)
            a.e("s_waitcnt lgkmcnt(4)")
        else:
            a.e("s_waitcnt lgkmcnt(0)")
        f = WF + 8 * (kk & 1)
        h = HR + (kk % NR) * 8
        opt = down and kk == nk - 1
        if opt:
            a.e("s_cmp_ge_u32 s60, 2")
            a.e(f"s_cbranch_scc1 {L}_skiplast")
        for t in range(2):
            for j in range(2):
                A = ACC + (t * 2 + j) * 16
                a.e(f"v_mfma_f32_32x32x16_bf16 v[{A}:{A+15}], v[{f+4*t}:{f+4*t+3}], v[{h+4*j}:{h+4*j+3}], v[{A}:{A+15}]")
        if opt:
            a.label(f"{L}_skiplast")
        if kk + NR < nk: issue(kk + NR)
    if st: st.stamp()
    setprio(a, 2)
    a.e("s_nop 7"); a.e("s_nop 7")
    a.e("s_barrier")
    a.e("s_lshl_b32 s68, s60, 12")
    a.e("v_add_u32 v6, s68, v5")
    for i in range(4):
        for q in range(4):
            r = ACC + i * 16 + q * 4
            a.e(f"ds_write_b128 v6, v[{r}:{r+3}] offset:{i * 16384 + q * 1024}")
    a.e("s_waitcnt lgkmcnt(0)")
    a.e("s_barrier")
    a.e("s_lshl_b32 s68, s60, 14")
    a.e("v_add_u32 v6, s68, v5")
    for s in range(4):
        for q in range(4):
            r = ACC + s * 16 + q * 4
            a.e(f"ds_read_b128 v[{r}:{r+3}], v6 offset:{s * 4096 + q * 1024}")
    a.e("s_waitcnt lgkmcnt(8)")
    for r in range(16): a.e(f"v_add_f32 v{ACC + r}, v{ACC + r}, v{ACC + 16 + r}")
    a.e("s_waitcnt lgkmcnt(0)")
    for r in range(16): a.e(f"v_add_f32 v{ACC + 32 + r}, v{ACC + 32 + r}, v{ACC + 48 + r}")
    for r in range(16): a.e(f"v_add_f32 v{ACC + r}, v{ACC + r}, v{ACC + 32 + r}")
    if down:
        a.e("s_and_b32 s71, s60, 1")
        a.e("s_lshr_b32 s72, s60, 1")
        a.e("s_lshl_b32 s73, s61, 1")
        a.e("s_add_u32 s73, s73, s71")
        a.e("s_lshl_b32 s74, s62, 1")
        a.e("s_add_u32 s74, s74, s72")
        a.e("s_lshl_b32 s75, s73, 4")
        a.e("s_add_u32 s75, s75, s74")
        a.e("s_lshl_b32 s75, s75, 12")
        a.e(f"s_add_u32 s75, s75, {BP}")
        for q in range(4):
            a.e(f"buffer_store_dwordx4 v[{ACC+4*q}:{ACC+4*q+3}], v5, s[{SWS}:{SWS+3}], s75 offen offset:{1024*q}{sc_st}")
    else:
        a.e(f"s_waitcnt vmcnt({vm.wait_for('bp')})")
        a.e("v_sub_f32 v13, 1.0, v13")
        for r in range(16): a.e(f"v_fmac_f32 v{ACC + r}, v13, v{BPR + r}")
        for p in range(8): a.e(f"v_cvt_pk_bf16_f32 v{ACC + 16 + p}, v{ACC + 2 * p}, v{ACC + 2 * p + 1}")
        a.e("v_lshlrev_b32 v6, 10, v3")
        a.e("v_lshlrev_b32 v7, 5, v4")
        a.e("v_add_u32 v6, v6, v7")
        a.e("s_lshl_b32 s73, s73, 15")
        a.e("s_lshl_b32 s74, s74, 6")
        a.e("s_add_u32 s73, s73, s74")
        a.e(f"buffer_store_dwordx4 v[{ACC+16}:{ACC+19}], v6, s[{SO}:{SO+3}], s73 offen")
        a.e(f"buffer_store_dwordx4 v[{ACC+20}:{ACC+23}], v6, s[{SO}:{SO+3}], s73 offen offset:16")

def gen_splitk_kernel(mode, kidx):
    def fn(a, label):
        kernel_head(a, label)
        a.e("s_cmp_ge_u32 s2, 0x100")
        a.e(f"s_cbranch_scc1 {label}_end")
        st = Stamper(a); st.real(76); st.stamp()
        load_ptrs(a)
        lane_setup(a)
        a.e("s_waitcnt lgkmcnt(0)")
        gen_splitk(a, label, mode, 2, st)
        if STAMPS:
            a.e("s_waitcnt vmcnt(0)")
            st.stamp(); st.real(94); st.dump(48, 2, 60, kidx, vtmp=14, name=label)
        a.label(f"{label}_end")
        a.e("s_endpgm")
        return kernel_desc(label, 176)
    return fn


def gen_dw(a, L, idreg, wait_up, wait_att, st=None, sc_ld=" sc0 sc1"):
    vm = VM()
    SW, SW2, SWS, SO = 40, 44, 48, 52
    ND, NW, NR = 22, 8, 8
    NT = ND + NW
    a.e(f"s_and_b32 s61, s{idreg}, 7")
    a.e("s_lshl_b32 s61, s61, 2")
    a.e(f"s_lshr_b32 s62, s{idreg}, 3")
    a.e("s_and_b32 s62, s62, 3")
    a.e("s_add_u32 s61, s61, s62")
    a.e(f"s_lshr_b32 s62, s{idreg}, 5")
    srd(a, SWS, P_WS, WS_USED)
    srd(a, SW, P_WD, 1376 * 1024)
    srd(a, SW2, P_WO, 512 * 1024)
    srd(a, SO, P_OUT, 2048 * 1024)
    a.e("s_mul_i32 s63, s60, 22")
    a.e("s_cmp_eq_u32 s60, 3")
    a.e("s_cselect_b32 s64, 1, 0")
    a.e("s_sub_u32 s63, s63, s64")
    a.e(f"s_mul_i32 s64, s61, {2 * 86}")
    a.e("s_add_u32 s64, s64, s63")
    a.e("s_lshl_b32 s64, s64, 10")
    a.e(f"s_add_u32 s64, s64, {HF}")
    a.e(f"s_add_u32 s65, s64, {86 * 1024}")
    a.e("s_lshl_b32 s66, s63, 14")
    a.e("s_lshl_b32 s67, s62, 7")
    a.e("s_add_u32 s66, s66, s67")
    a.e("s_lshl_b32 s4, s60, 17")
    a.e("s_add_u32 s4, s4, s67")
    a.e("s_lshl_b32 s5, s61, 6")
    a.e("s_lshl_b32 s6, s60, 3")
    a.e("s_add_u32 s5, s5, s6")
    a.e("s_lshl_b32 s5, s5, 10")
    a.e(f"s_add_u32 s5, s5, {OF}")
    a.e("s_add_u32 s6, s5, 0x8000")
    a.e("s_lshl_b32 s7, s61, 8")
    a.e(f"s_add_u32 s7, s7, {GG}")
    a.e("s_lshl_b32 s67, s60, 14")
    a.e("v_lshrrev_b32 v6, 3, v1")
    a.e("v_and_b32 v7, 7, v1")
    a.e("v_lshrrev_b32 v8, 1, v6")
    a.e("v_and_b32 v8, 1, v8")
    a.e("v_lshlrev_b32 v8, 2, v8")
    a.e("v_xor_b32 v7, v7, v8")
    a.e("v_lshlrev_b32 v7, 4, v7")
    a.e("v_lshlrev_b32 v6, 10, v6")
    a.e("v_add_u32 v8, v6, v7")
    ACC, HR, WF = 16, 80, 144
    def issue(kk, parts='wh'):
        sl = kk % NR
        last_opt = kk == ND - 1
        if last_opt:
            a.e("s_cmp_ge_u32 s60, 2")
            a.e(f"s_cselect_b32 s69, {(kk - 1)}, {kk}")
            a.e("s_lshl_b32 s70, s69, 10")
            a.e("s_lshl_b32 s69, s69, 14")
        if 'w' in parts:
            for i in range(2):
                a.e(f"s_add_u32 m0, s67, {sl * 2048 + i * 1024}")
                if kk >= ND:
                    a.e(f"s_add_u32 s68, s4, {(kk - ND) * 16384 + i * 8192}")
                elif last_opt:
                    a.e("s_add_u32 s68, s66, s69")
                    if i: a.e("s_add_u32 s68, s68, 8192")
                else:
                    a.e(f"s_add_u32 s68, s66, {kk * 16384 + i * 8192}")
                a.e(f"buffer_load_dwordx4 v8, s[{SW2 if kk >= ND else SW}:{(SW2 if kk >= ND else SW)+3}], s68 offen lds"); vm.issue(f'w{kk}')
        if 'h' in parts:
            for j in range(2):
                r = HR + sl * 8 + j * 4
                if kk >= ND: a.e(f"s_add_u32 s68, s{5 + j}, {(kk - ND) * 1024}")
                elif last_opt: a.e(f"s_add_u32 s68, s{64 + j}, s70")
                else: a.e(f"s_add_u32 s68, s{64 + j}, {kk * 1024}")
                a.e(f"buffer_load_dwordx4 v[{r}:{r+3}], v5, s[{SWS}:{SWS+3}], s68 offen{sc_ld}"); vm.issue(f'h{kk}')
    for kk in range(NR): issue(kk, 'w')
    a.e("v_lshrrev_b32 v6, 4, v1")
    a.e("v_and_b32 v7, 15, v1")
    a.e("v_lshrrev_b32 v9, 2, v7")
    a.e("v_and_b32 v10, 3, v7")
    a.e("v_lshrrev_b32 v11, 1, v6")
    a.e("v_lshlrev_b32 v11, 2, v11")
    a.e("v_add_u32 v11, v11, v9")
    a.e("v_lshlrev_b32 v11, 7, v11")
    a.e("v_and_b32 v12, 1, v10")
    a.e("v_lshlrev_b32 v12, 5, v12")
    a.e("v_add_u32 v11, v11, v12")
    a.e("v_and_b32 v12, 1, v6")
    a.e("v_lshlrev_b32 v12, 4, v12")
    a.e("v_add_u32 v11, v11, v12")
    a.e("v_lshrrev_b32 v12, 1, v10")
    a.e("v_lshlrev_b32 v12, 3, v12")
    a.e("v_add_u32 v11, v11, v12")
    a.e("v_lshrrev_b32 v12, 1, v9")
    a.e("v_lshlrev_b32 v12, 6, v12")
    a.e("v_add_u32 v11, v11, v12")
    a.e("v_add_u32 v11, s67, v11")
    a.e("v_xor_b32 v12, 64, v11")
    for r in range(64): a.e(f"v_mov_b32 v{ACC + r}, 0")
    wait_up()
    for kk in range(NR): issue(kk, 'h')
    def reads(kk):
        sl = kk % NR
        f = WF + 8 * (kk & 1)
        for t in range(2):
            a.e(f"ds_read_b64_tr_b16 v[{f+4*t}:{f+4*t+1}], v{11+t} offset:{sl * 2048}")
            a.e(f"ds_read_b64_tr_b16 v[{f+4*t+2}:{f+4*t+3}], v{11+t} offset:{sl * 2048 + 1024}")
    def mfmas(kk):
        f = WF + 8 * (kk & 1)
        h = HR + (kk % NR) * 8
        for t in range(2):
            for j in range(2):
                A = ACC + (t * 2 + j) * 16
                a.e(f"v_mfma_f32_32x32x16_bf16 v[{A}:{A+15}], v[{f+4*t}:{f+4*t+3}], v[{h+4*j}:{h+4*j+3}], v[{A}:{A+15}]")
    if st: st.stamp()
    setprio(a, 1)
    a.e(f"s_waitcnt vmcnt({vm.wait_for('w0', 'h0')})")
    reads(0)
    for kk in range(ND):
        tags = [f'w{kk+1}'] + ([f'h{kk+1}'] if kk + 1 < ND else [])
        a.e(f"s_waitcnt vmcnt({vm.wait_for(*tags)})")
        reads(kk + 1)
        a.e("s_waitcnt lgkmcnt(4)")
        opt = kk == ND - 1
        if opt:
            a.e("s_cmp_ge_u32 s60, 2")
            a.e(f"s_cbranch_scc1 {L}_skiplast")
        mfmas(kk)
        if opt:
            a.label(f"{L}_skiplast")
            a.flush_hist()
        if kk + NR < ND: issue(kk + NR)
        elif kk + NR < NT: issue(kk + NR, 'w')
    if st: st.stamp()
    setprio(a, 2)
    wait_att()
    a.e("v_lshlrev_b32 v13, 2, v3")
    a.e(f"buffer_load_dword v9, v13, s[{SWS}:{SWS+3}], s7 offen{sc_ld}"); vm.issue('g')
    a.e(f"buffer_load_dword v10, v13, s[{SWS}:{SWS+3}], s7 offen offset:128{sc_ld}"); vm.issue('g')
    for kk in range(ND, NT): issue(kk, 'h')
    a.e(f"s_waitcnt vmcnt({vm.wait_for('g')})")
    a.e("v_sub_f32 v9, 1.0, v9")
    a.e("v_sub_f32 v10, 1.0, v10")
    for t in range(2):
        for j in range(2):
            A = ACC + (t * 2 + j) * 16
            for r in range(16): a.e(f"v_mul_f32 v{A + r}, v{A + r}, v{9 + j}")
    for kk in range(ND, NT):
        tags = [f'h{kk}'] + ([f'w{kk+1}'] if kk + 1 < NT else [])
        a.e(f"s_waitcnt vmcnt({vm.wait_for(*tags)})")
        if kk + 1 < NT:
            reads(kk + 1)
            a.e("s_waitcnt lgkmcnt(4)")
        else:
            a.e("s_waitcnt lgkmcnt(0)")
        mfmas(kk)
    if st: st.stamp()
    a.e("s_nop 7"); a.e("s_nop 7")
    a.e("s_barrier")
    a.e("s_lshl_b32 s68, s60, 12")
    a.e("v_add_u32 v6, s68, v5")
    for i in range(4):
        for q in range(4):
            r = ACC + i * 16 + q * 4
            a.e(f"ds_write_b128 v6, v[{r}:{r+3}] offset:{i * 16384 + q * 1024}")
    a.e("s_waitcnt lgkmcnt(0)")
    a.e("s_barrier")
    a.e("s_lshl_b32 s68, s60, 14")
    a.e("v_add_u32 v6, s68, v5")
    for s in range(4):
        for q in range(4):
            r = ACC + s * 16 + q * 4
            a.e(f"ds_read_b128 v[{r}:{r+3}], v6 offset:{s * 4096 + q * 1024}")
    a.e("s_and_b32 s71, s60, 1")
    a.e("s_lshr_b32 s72, s60, 1")
    a.e("s_lshl_b32 s73, s61, 1")
    a.e("s_add_u32 s73, s73, s71")
    a.e("s_lshl_b32 s74, s62, 1")
    a.e("s_add_u32 s74, s74, s72")
    a.e("v_lshlrev_b32 v6, 10, v3")
    a.e("v_lshlrev_b32 v7, 5, v4")
    a.e("v_add_u32 v6, v6, v7")
    a.e("s_lshl_b32 s73, s73, 15")
    a.e("s_lshl_b32 s74, s74, 6")
    a.e("s_add_u32 s73, s73, s74")
    a.e("s_waitcnt lgkmcnt(8)")
    for r in range(16): a.e(f"v_add_f32 v{ACC + r}, v{ACC + r}, v{ACC + 16 + r}")
    a.e("s_waitcnt lgkmcnt(0)")
    for r in range(16): a.e(f"v_add_f32 v{ACC + 32 + r}, v{ACC + 32 + r}, v{ACC + 48 + r}")
    for r in range(16): a.e(f"v_add_f32 v{ACC + r}, v{ACC + r}, v{ACC + 32 + r}")
    for p in range(8): a.e(f"v_cvt_pk_bf16_f32 v{ACC + 16 + p}, v{ACC + 2 * p}, v{ACC + 2 * p + 1}")
    a.e(f"buffer_store_dwordx4 v[{ACC+16}:{ACC+19}], v6, s[{SO}:{SO+3}], s73 offen")
    a.e(f"buffer_store_dwordx4 v[{ACC+20}:{ACC+23}], v6, s[{SO}:{SO+3}], s73 offen offset:16")
```

```python
from common import *
import k2b, k2g, os

SPIN_MAX = 1 << 16

def signal(a, L, cnt_off_sgpr, SWS=48, gate=None):
    a.e("s_waitcnt vmcnt(0)")
    a.e("s_barrier")
    a.e("s_cmp_lg_u32 s60, 0")
    a.e(f"s_cbranch_scc1 {L}_nosig")
    if gate:
        vf, sd = gate
        a.e("s_mov_b32 s58, 0")
        a.label(f"{L}_gate")
        a.e(f"v_readfirstlane_b32 s57, v{vf}")
        a.e("s_cmp_lg_u32 s57, 0")
        a.e(f"s_cbranch_scc1 {L}_gateok")
        a.e("v_mov_b32 v6, 0")
        a.e(f"buffer_load_dword v{vf}, v6, s[{sd}:{sd+3}], 0 offen sc0 sc1")
        a.e("s_waitcnt vmcnt(0)")
        a.e("s_add_u32 s58, s58, 1")
        a.e(f"s_cmp_lt_u32 s58, {SPIN_MAX}")
        a.e(f"s_cbranch_scc1 {L}_gate")
        a.label(f"{L}_gateok")
        a.flush_hist()
    a.e("v_mov_b32 v6, 0")
    a.e("v_mov_b32 v7, 1")
    a.e("s_mov_b64 exec, 1")
    a.e(f"buffer_atomic_add v7, v6, s[{SWS}:{SWS+3}], s{cnt_off_sgpr} offen sc1")
    a.e("s_mov_b64 exec, -1")
    a.label(f"{L}_nosig")
    a.flush_hist()

def wait_cnt(a, L, cnt_off_sgpr, target, SWS=48, two=False):
    a.e("s_cmp_lg_u32 s60, 0")
    a.e(f"s_cbranch_scc1 {L}_wdone")
    a.e("v_mov_b32 v6, 0")
    a.e("s_mov_b32 s58, 0")
    a.label(f"{L}_poll")
    a.e(f"buffer_load_dword v7, v6, s[{SWS}:{SWS+3}], s{cnt_off_sgpr} offen sc0 sc1")
    if two: a.e(f"buffer_load_dword v9, v6, s[{SWS}:{SWS+3}], s{cnt_off_sgpr} offen offset:{two} sc0 sc1")
    a.e("s_waitcnt vmcnt(0)")
    if two: a.e("v_min_u32 v7, v7, v9")
    a.e("v_readfirstlane_b32 s57, v7")
    a.e(f"s_cmp_ge_u32 s57, {target}")
    a.e(f"s_cbranch_scc1 {L}_wdone")
    a.e("s_add_u32 s58, s58, 1")
    a.e(f"s_cmp_lt_u32 s58, {SPIN_MAX}")
    a.e(f"s_cbranch_scc1 {L}_poll")
    a.label(f"{L}_wdone")
    a.flush_hist()
    a.e("s_barrier")

def gen_k2(a, label):
    kernel_head(a, label)
    a.e("s_cmp_ge_u32 s2, 0x200")
    a.e(f"s_cbranch_scc1 {label}_end")
    load_ptrs(a)
    st = Stamper(a); st.real(76); st.stamp()
    a.e("s_cmp_ge_u32 s2, 0x100")
    a.e(f"s_cbranch_scc1 {label}_G")
    a.e("s_waitcnt lgkmcnt(0)")
    k2b.gen_attn2(a, label + "_A", 2, st, prio=int(os.environ.get('APRIO', '2')))
    if STAMPS:
        a.e("s_waitcnt vmcnt(0)")
        st.stamp(); st.real(94); st.dump(48, 2, 60, 1, vtmp=20, name=label)
    a.e("s_endpgm")
    a.flush_hist()
    a.label(f"{label}_G")
    st2 = Stamper(a); st2.n = 1
    a.e("s_sub_u32 s56, s2, 0x100")
    if os.environ.get('GPRIO'): a.e(f"s_setprio {os.environ['GPRIO']}")
    a.e("s_waitcnt lgkmcnt(0)")
    k2g.gen_up(a, label + "_U", 56, st2, sc=" sc0 sc1")
    a.e("s_lshl_b32 s59, s61, 6")
    a.e(f"s_add_u32 s59, s59, {CNT}")
    signal(a, label + "_S", 59)
    st2.stamp()
    a.e("s_and_b32 s61, s56, 7")
    a.e("s_lshl_b32 s61, s61, 2")
    a.e("s_lshr_b32 s62, s56, 3")
    a.e("s_and_b32 s62, s62, 3")
    a.e("s_add_u32 s61, s61, s62")
    a.e("s_lshr_b32 s61, s61, 1")
    a.e("s_lshl_b32 s59, s61, 6")
    a.e(f"s_add_u32 s59, s59, {CNT}")
    wait_cnt(a, label + "_W", 59, 16)
    st2.stamp()
    k2g.gen_splitk(a, label + "_D", 'down', 56, None, sc_ld=" sc0 sc1")
    if STAMPS:
        a.e("s_waitcnt vmcnt(0)")
        st2.stamp(); st2.real(94); st2.dump(48, 2, 60, 1, vtmp=14, name=label + "_g")
    a.label(f"{label}_end")
    a.e("s_endpgm")
    return kernel_desc(label, 176)

CU, CA, CB = CNT, CNT + 2048, CNT + 3072

def gen_k2f(a, label):
    import k2g
    kernel_head(a, label)
    a.e("s_cmp_ge_u32 s2, 0x200")
    a.e(f"s_cbranch_scc1 {label}_end")
    load_ptrs(a)
    st = Stamper(a); st.real(76); st.stamp()
    a.e("s_cmp_ge_u32 s2, 0x100")
    a.e(f"s_cbranch_scc1 {label}_G")
    a.e("s_waitcnt lgkmcnt(0)")
    k2b.gen_attn2(a, label + "_A", 2, st, prio=int(os.environ.get('APRIO', '1')), sc=" sc0 sc1", mid=False)
    a.e("s_lshl_b32 s59, s62, 7")
    a.e(f"s_add_u32 s59, s59, {CA}")
    signal(a, label + "_SA", 59)
    if st: st.stamp()
    a.e("s_mov_b32 s54, s61")
    a.e("s_mov_b32 s55, s62")
    k2g.lane_setup(a)
    def tile():
        a.e("s_lshl_b32 s61, s55, 2")
        a.e("s_lshr_b32 s62, s54, 3")
        a.e("s_add_u32 s61, s61, s62")
        a.e("s_and_b32 s62, s54, 7")
    def waitf():
        wait_cnt(a, label + "_WA", 59, 32, two=CB - CA)
        if st: st.stamp()
    k2g.gen_splitk(a, label + "_O", 'wo', 2, None, sc_ld=" sc0 sc1", wait_fn=waitf, tile_fn=tile)
    if STAMPS:
        a.e("s_waitcnt vmcnt(0)")
        st.stamp(); st.real(94); st.dump(48, 2, 60, 1, vtmp=14, name=label)
    a.e("s_endpgm")
    a.flush_hist()
    a.label(f"{label}_G")
    st2 = Stamper(a); st2.n = 1
    a.e("s_sub_u32 s56, s2, 0x100")
    a.e("s_waitcnt lgkmcnt(0)")
    k2g.gen_up(a, label + "_U", 56, st2, sc=" sc0 sc1")
    a.e("s_lshl_b32 s59, s61, 7")
    a.e(f"s_add_u32 s59, s59, {CU}")
    signal(a, label + "_S", 59)
    st2.stamp()
    a.e("s_and_b32 s61, s56, 7")
    a.e("s_lshl_b32 s61, s61, 2")
    a.e("s_lshr_b32 s62, s56, 3")
    a.e("s_and_b32 s62, s62, 3")
    a.e("s_add_u32 s61, s61, s62")
    a.e("s_lshr_b32 s55, s61, 2")
    a.e("s_lshr_b32 s61, s61, 1")
    a.e("s_lshl_b32 s59, s61, 7")
    a.e(f"s_add_u32 s59, s59, {CU}")
    def waitg():
        wait_cnt(a, label + "_W", 59, 16)
        st2.stamp()
    k2g.gen_splitk(a, label + "_D", 'down', 56, None, sc_ld=" sc0 sc1", sc_st=" sc0 sc1", wait_fn=waitg)
    a.e("s_lshl_b32 s59, s55, 7")
    a.e(f"s_add_u32 s59, s59, {CB}")
    signal(a, label + "_SB", 59)
    if STAMPS:
        st2.stamp(); st2.stamp(); st2.real(94); st2.dump(48, 2, 60, 1, vtmp=14, name=label + "_g")
    a.label(f"{label}_end")
    a.e("s_endpgm")
    return kernel_desc(label, 176)

CQ = CNT + 4096
def gen_fused(a, label):
    import k2g, k1b
    SCL = os.environ.get('SCL', ' sc0 sc1')
    kernel_head(a, label)
    a.e("s_cmp_ge_u32 s2, 0x200")
    a.e(f"s_cbranch_scc1 {label}_end")
    load_ptrs(a)
    a.e("s_load_dwordx2 s[36:37], s[0:1], 72")
    st = Stamper(a); st.real(76); st.stamp()
    SD = 96
    a.e("s_cmp_ge_u32 s2, 0x100")
    a.e(f"s_cbranch_scc1 {label}_G")
    a.e("s_waitcnt lgkmcnt(0)")
    a.e("s_setprio 2")
    srd(a, SD, 36, 256)
    def flag_load(vf):
        def h(s, vm):
            if s == 14:
                a.e(f"v_mov_b32 v{vf}, 0")
                a.e(f"buffer_load_dword v{vf}, v{vf}, s[{SD}:{SD+3}], 0 offen sc0 sc1"); vm.issue('pf')
        return h
    k1b.gen_qkv(a, label + "_Q", 2, None, sc=" sc0 sc1", prefetch=False, hook=flag_load(156))
    a.e("s_lshl_b32 s59, s62, 7")
    a.e(f"s_add_u32 s59, s59, {CQ}")
    signal(a, label + "_SQ", 59, gate=(156, SD))
    st.stamp()
    a.e("s_and_b32 s59, s2, 7")
    a.e("s_lshl_b32 s59, s59, 7")
    a.e(f"s_add_u32 s59, s59, {CQ}")
    wait_cnt(a, label + "_WQ", 59, 32)
    st.stamp()
    k2b.gen_attn2(a, label + "_A", 2, None, prio=int(os.environ.get('APRIO', '1')), sc=" sc0 sc1", mid=False, scl=SCL)
    st.stamp()
    a.e("s_lshl_b32 s59, s62, 7")
    a.e(f"s_add_u32 s59, s59, {CA}")
    signal(a, label + "_SA", 59)
    st.stamp()
    a.e("s_mov_b32 s54, s61")
    a.e("s_mov_b32 s55, s62")
    k2g.lane_setup(a)
    def tile():
        a.e("s_lshl_b32 s61, s55, 2")
        a.e("s_lshr_b32 s62, s54, 3")
        a.e("s_add_u32 s61, s61, s62")
        a.e("s_and_b32 s62, s54, 7")
    def waitf():
        wait_cnt(a, label + "_WA", 59, 32, two=CB - CA)
        st.stamp()
    k2g.gen_splitk(a, label + "_O", 'wo', 2, None, sc_ld=" sc0 sc1", wait_fn=waitf, tile_fn=tile)
    if STAMPS:
        a.e("s_waitcnt vmcnt(0)")
        st.stamp(); st.real(94); st.dump(48, 2, 60, 0, vtmp=14, name=label)
    a.e("s_endpgm")
    a.flush_hist()
    a.label(f"{label}_G")
    st2 = Stamper(a); st2.n = 1
    a.e("s_sub_u32 s56, s2, 0x100")
    a.e("s_waitcnt lgkmcnt(0)")
    srd(a, SD, 36, 256)
    a.e("s_cmp_lg_u32 s56, 0")
    a.e(f"s_cbranch_scc1 {label}_noinit")
    a.e("v_cmp_gt_u32 vcc, 64, v0")
    a.e("s_cbranch_vccz " + f"{label}_noinit")
    srd(a, 48, P_WS, WS_USED)
    a.e("v_lshlrev_b32 v7, 4, v0")
    for r in range(4): a.e(f"v_mov_b32 v{8 + r}, 0")
    a.e(f"s_mov_b32 s59, {CNT}")
    for i in range(4): a.e(f"buffer_store_dwordx4 v[8:11], v7, s[48:51], s59 offen offset:{1024 * i} sc0 sc1")
    a.e(f"s_mov_b32 s59, {CNT + 4096}")
    a.e(f"buffer_store_dwordx4 v[8:11], v7, s[48:51], s59 offen sc0 sc1")
    a.e("s_waitcnt vmcnt(0)")
    a.e("v_mov_b32 v8, 1")
    a.e("v_mov_b32 v7, 0")
    a.e("s_mov_b64 exec, 1")
    a.e(f"buffer_store_dword v8, v7, s[{SD}:{SD+3}], 0 offen sc0 sc1")
    a.e("s_mov_b64 exec, -1")
    a.label(f"{label}_noinit")
    a.flush_hist()
    def ghook(s, vm):
        if s == 13:
            a.e("s_lshl_b32 s14, s56, 2")
            a.e("s_add_u32 s14, s14, s60")
            a.e("s_lshl_b32 s14, s14, 10")
            a.e("s_add_u32 s15, s14, 0x100000")
            srd(a, 8, P_WD, 1376 * 1024)
            a.e("buffer_load_dwordx4 v[172:175], v5, s[8:11], s14 offen"); vm.issue('pf')
            a.e("buffer_load_dwordx4 v[172:175], v5, s[8:11], s15 offen"); vm.issue('pf')
            srd(a, 8, P_WO, 512 * 1024)
            a.e("buffer_load_dwordx4 v[172:175], v5, s[8:11], s14 offen"); vm.issue('pf')
        if s == 14:
            a.e("v_mov_b32 v13, 0")
            a.e(f"buffer_load_dword v13, v13, s[{SD}:{SD+3}], 0 offen sc0 sc1"); vm.issue('pf')
    k2g.gen_up(a, label + "_U", 56, st2, sc=" sc0 sc1", hook=ghook)
    a.e("s_lshl_b32 s59, s61, 7")
    a.e(f"s_add_u32 s59, s59, {CU}")
    signal(a, label + "_S", 59, gate=(13, SD))
    st2.stamp()
    a.e("s_and_b32 s61, s56, 7")
    a.e("s_lshl_b32 s61, s61, 2")
    a.e("s_lshr_b32 s62, s56, 3")
    a.e("s_and_b32 s62, s62, 3")
    a.e("s_add_u32 s61, s61, s62")
    a.e("s_lshr_b32 s55, s61, 2")
    a.e("s_lshr_b32 s61, s61, 1")
    a.e("s_lshl_b32 s59, s61, 7")
    a.e(f"s_add_u32 s59, s59, {CU}")
    def waitg():
        wait_cnt(a, label + "_W", 59, 16)
        st2.stamp()
    k2g.gen_splitk(a, label + "_D", 'down', 56, None, sc_ld=" sc0 sc1", sc_st=" sc0 sc1", wait_fn=waitg)
    a.e("s_lshl_b32 s59, s55, 7")
    a.e(f"s_add_u32 s59, s59, {CB}")
    signal(a, label + "_SB", 59)
    if STAMPS:
        st2.stamp(); st2.stamp(); st2.real(94); st2.dump(48, 2, 60, 0, vtmp=14, name=label + "_g")
    a.label(f"{label}_end")
    a.e("s_endpgm")
    return kernel_desc(label, 176, sgpr=100)


def g_role(a, label, SD=None, ghook=None, dump_k=1):
    st2 = Stamper(a); st2.n = 1
    k2g.gen_up(a, label + "_U", 56, st2, sc=" sc0 sc1", hook=ghook)
    a.e("s_lshl_b32 s59, s61, 7")
    a.e(f"s_add_u32 s59, s59, {CU}")
    signal(a, label + "_S", 59, gate=(13, SD) if SD else None)
    st2.stamp()
    a.e("s_and_b32 s3, s56, 7")
    a.e("s_lshl_b32 s3, s3, 2")
    a.e("s_lshr_b32 s55, s56, 3")
    a.e("s_and_b32 s55, s55, 3")
    a.e("s_add_u32 s3, s3, s55")
    a.e("s_lshr_b32 s55, s3, 2")
    a.e("s_lshr_b32 s3, s3, 1")
    a.e("s_lshl_b32 s59, s3, 7")
    a.e(f"s_add_u32 s59, s59, {CU}")
    a.e("s_lshl_b32 s3, s55, 7")
    a.e(f"s_add_u32 s3, s3, {CA}")
    def wu():
        wait_cnt(a, label + "_W", 59, 16)
        st2.stamp()
    def wa():
        wait_cnt(a, label + "_WA", 3, 32)
        st2.stamp()
    k2g.gen_dw(a, label + "_D", 56, wu, wa, st=None if not STAMPS else None)
    if STAMPS:
        a.e("s_waitcnt vmcnt(0)")
        st2.stamp(); st2.real(94); st2.dump(48, 2, 60, dump_k, vtmp=14, name=label + "_g")

def gen_k2h(a, label):
    kernel_head(a, label)
    a.e("s_cmp_ge_u32 s2, 0x200")
    a.e(f"s_cbranch_scc1 {label}_end")
    load_ptrs(a)
    st = Stamper(a); st.real(76); st.stamp()
    a.e("s_cmp_ge_u32 s2, 0x100")
    a.e(f"s_cbranch_scc1 {label}_G")
    a.e("s_waitcnt lgkmcnt(0)")
    k2b.gen_attn2(a, label + "_A", 2, st, prio=int(os.environ.get('APRIO', '1')), sc=" sc0 sc1", mid=False)
    a.e("s_lshl_b32 s59, s62, 7")
    a.e(f"s_add_u32 s59, s59, {CA}")
    signal(a, label + "_SA", 59)
    if STAMPS:
        st.stamp(); st.stamp(); st.real(94); st.dump(48, 2, 60, 1, vtmp=14, name=label)
    a.e("s_endpgm")
    a.flush_hist()
    a.label(f"{label}_G")
    a.e("s_sub_u32 s56, s2, 0x100")
    a.e("s_waitcnt lgkmcnt(0)")
    g_role(a, label)
    a.label(f"{label}_end")
    a.e("s_endpgm")
    return kernel_desc(label, 176)

def gen_fused2(a, label):
    import k1b
    SCL = os.environ.get('SCL', ' sc0 sc1')
    kernel_head(a, label)
    a.e("s_cmp_ge_u32 s2, 0x200")
    a.e(f"s_cbranch_scc1 {label}_end")
    load_ptrs(a)
    a.e("s_load_dwordx2 s[36:37], s[0:1], 72")
    st = Stamper(a); st.real(76); st.stamp()
    SD = 96
    a.e("s_cmp_ge_u32 s2, 0x100")
    a.e(f"s_cbranch_scc1 {label}_G")
    a.e("s_waitcnt lgkmcnt(0)")
    a.e("s_setprio 2")
    srd(a, SD, 36, 256)
    def flag_load(vf):
        def h(s, vm):
            if s == 14:
                a.e(f"v_mov_b32 v{vf}, 0")
                a.e(f"buffer_load_dword v{vf}, v{vf}, s[{SD}:{SD+3}], 0 offen sc0 sc1"); vm.issue('pf')
        return h
    k1b.gen_qkv(a, label + "_Q", 2, None, sc=" sc0 sc1", prefetch=False, hook=flag_load(156))
    a.e("s_lshl_b32 s59, s62, 7")
    a.e(f"s_add_u32 s59, s59, {CQ}")
    signal(a, label + "_SQ", 59, gate=(156, SD))
    st.stamp()
    a.e("s_and_b32 s59, s2, 7")
    a.e("s_lshl_b32 s59, s59, 7")
    a.e(f"s_add_u32 s59, s59, {CQ}")
    wait_cnt(a, label + "_WQ", 59, 32)
    st.stamp()
    k2b.gen_attn2(a, label + "_A", 2, None, prio=int(os.environ.get('APRIO', '1')), sc=" sc0 sc1", mid=False, scl=SCL)
    st.stamp()
    a.e("s_lshl_b32 s59, s62, 7")
    a.e(f"s_add_u32 s59, s59, {CA}")
    signal(a, label + "_SA", 59)
    if STAMPS:
        st.stamp(); st.stamp(); st.real(94); st.dump(48, 2, 60, 0, vtmp=14, name=label)
    a.e("s_endpgm")
    a.flush_hist()
    a.label(f"{label}_G")
    a.e("s_sub_u32 s56, s2, 0x100")
    a.e("s_waitcnt lgkmcnt(0)")
    srd(a, SD, 36, 256)
    a.e("s_cmp_lg_u32 s56, 0")
    a.e(f"s_cbranch_scc1 {label}_noinit")
    a.e("v_cmp_gt_u32 vcc, 64, v0")
    a.e("s_cbranch_vccz " + f"{label}_noinit")
    srd(a, 48, P_WS, WS_USED)
    a.e("v_lshlrev_b32 v7, 4, v0")
    for r in range(4): a.e(f"v_mov_b32 v{8 + r}, 0")
    a.e(f"s_mov_b32 s59, {CNT}")
    for i in range(4): a.e(f"buffer_store_dwordx4 v[8:11], v7, s[48:51], s59 offen offset:{1024 * i} sc0 sc1")
    a.e(f"s_mov_b32 s59, {CNT + 4096}")
    a.e(f"buffer_store_dwordx4 v[8:11], v7, s[48:51], s59 offen sc0 sc1")
    a.e("s_waitcnt vmcnt(0)")
    a.e("v_mov_b32 v8, 1")
    a.e("v_mov_b32 v7, 0")
    a.e("s_mov_b64 exec, 1")
    a.e(f"buffer_store_dword v8, v7, s[{SD}:{SD+3}], 0 offen sc0 sc1")
    a.e("s_mov_b64 exec, -1")
    a.label(f"{label}_noinit")
    a.flush_hist()
    def ghook(s, vm):
        if s == 13:
            a.e("s_lshl_b32 s14, s56, 2")
            a.e("s_add_u32 s14, s14, s60")
            a.e("s_lshl_b32 s14, s14, 10")
            a.e("s_add_u32 s15, s14, 0x100000")
            srd(a, 8, P_WD, 1376 * 1024)
            a.e("buffer_load_dwordx4 v[172:175], v5, s[8:11], s14 offen"); vm.issue('pf')
            a.e("buffer_load_dwordx4 v[172:175], v5, s[8:11], s15 offen"); vm.issue('pf')
            srd(a, 8, P_WO, 512 * 1024)
            a.e("buffer_load_dwordx4 v[172:175], v5, s[8:11], s14 offen"); vm.issue('pf')
        if s == 14:
            a.e("v_mov_b32 v13, 0")
            a.e(f"buffer_load_dword v13, v13, s[{SD}:{SD+3}], 0 offen sc0 sc1"); vm.issue('pf')
    g_role(a, label, SD=SD, ghook=ghook, dump_k=0)
    a.label(f"{label}_end")
    a.e("s_endpgm")
    return kernel_desc(label, 176, sgpr=100)
```

```python
import k1, k1b, k2a, k2g, k2b, k2m, os
def stages(cfg):
    if cfg == 'simple':
        return [("k1_qkv_kernel", 256, 256, 163840, k1.gen_k1),
                ("k2_attn_kernel", 512, 256, 81920, k2a.gen_attn),
                ("k3_up_kernel", 256, 256, 81920, k2g.gen_up_kernel),
                ("k4_down_kernel", 256, 256, 65536, k2g.gen_splitk_kernel('down', 3)),
                ("k5_wo_kernel", 256, 256, 65536, k2g.gen_splitk_kernel('wo', 4))]
    if cfg == 'simple2':
        return [("k1_qkv_kernel", 256, 256, 163840, k1.gen_k1),
                ("k2_attn_kernel", 256, 256, 81920, k2b.gen_attn2_kernel),
                ("k3_up_kernel", 256, 256, 81920, k2g.gen_up_kernel),
                ("k4_down_kernel", 256, 256, 65536, k2g.gen_splitk_kernel('down', 3)),
                ("k5_wo_kernel", 256, 256, 65536, k2g.gen_splitk_kernel('wo', 4))]
    if cfg == 'm3':
        return [("k1_qkv_kernel", 256, 256, 163840, k1.gen_k1),
                ("k2_mix_kernel", 512, 256, 81920, k2m.gen_k2),
                ("k5_wo_kernel", 256, 256, 65536, k2g.gen_splitk_kernel('wo', 2))]
    if cfg == 'm3b':
        return [("k1_qkv_kernel", 256, 256, 81920, k1b.gen_k1b),
                ("k2_mix_kernel", 512, 256, 81920, k2m.gen_k2),
                ("k5_wo_kernel", 256, 256, 65536, k2g.gen_splitk_kernel('wo', 2))]
    if cfg == 'f2':
        return [("k1_qkv_kernel", 256, 256, 81920, k1b.gen_k1b),
                ("k2_mix_kernel", 512, 256, 81920, k2m.gen_k2f)]
    if cfg == 'f1':
        return [("gated_mix__softmax_full_mha__swiglu_ffn__prompt_kernel", 512, 256, 81920, k2m.gen_fused)]
    if cfg == 'h2':
        return [("k1_qkv_kernel", 256, 256, 81920, k1b.gen_k1b),
                ("k2_mix_kernel", 512, 256, 81920, k2m.gen_k2h)]
    if cfg == 'h1':
        return [("gated_mix__softmax_full_mha__swiglu_ffn__prompt_kernel", 512, 256, 81920, k2m.gen_fused2)]
    raise ValueError(cfg)
```

```python
from asmlib import *
import struct
NAME = "gated_mix__softmax_full_mha__swiglu_ffn__prompt"
QF   = 0x0000000
KVF  = 0x0200000
XF   = 0x0600000
HF   = 0x0800000
OF   = 0x0E00000
BP   = 0x1000000
KMAX = 0x1400000
GG   = 0x1402000
CNT  = 0x1404000
WS_USED = 0x1600000
def f32(x):
    return "0x%08x" % struct.unpack("<I", struct.pack("<f", x))[0]

class VM:
    def __init__(self): self.q = []
    def issue(self, tag): self.q.append(tag)
    def wait_for(self, *tags):
        last = -1
        for i, t in enumerate(self.q):
            if t in tags: last = i
        n = len(self.q) - 1 - last
        self.q = self.q[last + 1:]
        return n

def srd(a, d, lo, nbytes, off=None):
    if off:
        a.e(f"s_add_u32 s{d}, s{lo}, {hex(off)}")
        a.e(f"s_addc_u32 s{d+1}, s{lo+1}, 0")
    else:
        a.e(f"s_mov_b32 s{d}, s{lo}")
        a.e(f"s_mov_b32 s{d+1}, s{lo+1}")
    a.e(f"s_mov_b32 s{d+2}, {hex(nbytes)}")
    a.e(f"s_mov_b32 s{d+3}, 0x20000")

def kernel_head(a, label):
    a.raw(f".globl {label}\n.p2align 8\n.type {label},@function\n{label}:")
    a.flush_hist()

def kernel_desc(label, vgpr, sgpr=96):
    acc = (vgpr + 3) // 4 * 4
    return f""".amdhsa_kernel {label}
  .amdhsa_next_free_vgpr {vgpr}
  .amdhsa_next_free_sgpr {sgpr}
  .amdhsa_accum_offset {acc}
  .amdhsa_group_segment_fixed_size 0
  .amdhsa_kernarg_size 88
  .amdhsa_user_sgpr_count 2
  .amdhsa_user_sgpr_kernarg_segment_ptr 1
  .amdhsa_system_sgpr_workgroup_id_x 1
.end_amdhsa_kernel
"""

def load_ptrs(a):
    a.e("s_load_dwordx16 s[16:31], s[0:1], 0")
    a.e("s_load_dwordx2 s[32:33], s[0:1], 64")
    a.e("s_load_dwordx2 s[34:35], s[0:1], 80")
P_AX, P_WQKV, P_WO, P_BX, P_WG, P_WU, P_WD, P_GW, P_OUT, P_WS = 16, 18, 20, 22, 24, 26, 28, 30, 32, 34

def dma(a, vm, tag, voff, srdreg, soff_val, lds_addr, stmp=15):
    a.e(f"s_mov_b32 m0, {lds_addr if isinstance(lds_addr, str) else hex(lds_addr)}")
    if isinstance(soff_val, str):
        a.e(f"s_nop 0")
        so = soff_val
    else:
        a.e(f"s_mov_b32 s{stmp}, {hex(soff_val)}")
        so = f"s{stmp}"
    a.e(f"buffer_load_dwordx4 v{voff}, s[{srdreg}:{srdreg+3}], {so} offen lds")
    vm.issue(tag)

def wave_max_dpp(a, v, half_only=True):
    for sh in (1, 2, 4, 8):
        a.e(f"v_max_f32_dpp v{v}, v{v}, v{v} row_shr:{sh} row_mask:0xf bank_mask:0xf bound_ctrl:0")
    a.e(f"v_max_f32_dpp v{v}, v{v}, v{v} row_bcast:15 row_mask:0xa bank_mask:0xf bound_ctrl:0")
    if not half_only:
        a.e(f"v_max_f32_dpp v{v}, v{v}, v{v} row_bcast:31 row_mask:0xc bank_mask:0xf bound_ctrl:0")

def wave_sum_dpp(a, v):
    for sh in (1, 2, 4, 8):
        a.e(f"v_add_f32_dpp v{v}, v{v}, v{v} row_shr:{sh} row_mask:0xf bank_mask:0xf bound_ctrl:0")
    a.e(f"v_add_f32_dpp v{v}, v{v}, v{v} row_bcast:15 row_mask:0xa bank_mask:0xf bound_ctrl:0")
    a.e(f"v_add_f32_dpp v{v}, v{v}, v{v} row_bcast:31 row_mask:0xc bank_mask:0xf bound_ctrl:0")

STAMP = 0x1480000
import os
DBGT = os.environ.get('DBGT', '')
STAMPS = os.environ.get('STAMPS', '0') == '1' or bool(DBGT)
class Stamper:
    def __init__(self, a): self.a = a; self.n = 0
    def stamp(self):
        if not STAMPS: return
        r = 80 + 2 * self.n; self.n += 1
        self.a.e(f"s_memrealtime s[{r}:{r+1}]" if DBGT else f"s_memtime s[{r}:{r+1}]")
    def real(self, r):
        if not STAMPS: return
        self.a.e(f"s_memrealtime s[{r}:{r+1}]")
    def dump(self, sws, wgid_sgpr, wave_sgpr, kidx, vtmp=46, name='x'):
        if not STAMPS: return
        a = self.a
        if DBGT:
            a.e("s_waitcnt lgkmcnt(0)")
            a.e(f"s_cmp_lg_u32 s{wave_sgpr}, 0")
            a.e(f"s_cbranch_scc1 {name}_dbgdone")
            a.e(f"v_mov_b32 v{vtmp+1}, 0")
            a.e("s_mov_b64 exec, 1")
            for ent in DBGT.split(','):
                wg, slot = [int(x) for x in ent.split(':')]
                a.e(f"s_cmp_lg_u32 s{wgid_sgpr}, {wg}")
                a.e(f"s_cbranch_scc1 {name}_dbg{wg}")
                for i in range(self.n):
                    if slot + i > 15: break
                    a.e(f"v_mov_b32 v{vtmp}, s{80 + 2 * i}")
                    a.e(f"buffer_store_dword v{vtmp}, v{vtmp+1}, s[96:99], 0 offen offset:{4 * (slot + i)}")
                a.label(f"{name}_dbg{wg}")
                a.flush_hist()
            a.label(f"{name}_dbgdone")
            a.flush_hist()
            return
        a.e("s_waitcnt lgkmcnt(0)")
        a.e(f"s_lshl_b32 s78, s{wgid_sgpr}, 3")
        a.e(f"s_add_u32 s78, s78, s{wave_sgpr}")
        a.e(f"s_lshl_b32 s78, s78, 6")
        a.e(f"s_add_u32 s78, s78, {STAMP + kidx * 0x40000}")
        a.e(f"v_mov_b32 v{vtmp+1}, 0")
        for i in range(self.n):
            a.e(f"v_mov_b32 v{vtmp}, s{80 + 2 * i}")
            a.e(f"buffer_store_dword v{vtmp}, v{vtmp+1}, s[{sws}:{sws+3}], s78 offen offset:{4 * i}")
        for k, r in enumerate((76, 94)):
            a.e(f"v_mov_b32 v{vtmp}, s{r}")
            a.e(f"buffer_store_dword v{vtmp}, v{vtmp+1}, s[{sws}:{sws+3}], s78 offen offset:{56 + 4 * k}")
```

```python
from common import *
import os
C_SCALE = 0.25 * 1.4426950408889634

def gen_qkv(a, L, idreg, st=None, sc="", prefetch=True, hook=None):
    vm = VM()
    SX, SW, SWS, SGW = 40, 44, 48, 56
    a.e("v_and_b32 v1, 63, v0")
    a.e("v_lshrrev_b32 v2, 6, v0")
    a.e("v_readfirstlane_b32 s60, v2")
    a.e("v_and_b32 v3, 31, v1")
    a.e("v_lshrrev_b32 v4, 5, v1")
    a.e(f"s_and_b32 s3, s{idreg}, 7")
    a.e(f"s_lshr_b32 s4, s{idreg}, 3")
    a.e("s_and_b32 s5, s3, 1")
    a.e("s_lshl_b32 s5, s5, 2")
    a.e("s_and_b32 s6, s4, 3")
    a.e("s_add_u32 s62, s5, s6")
    a.e("s_lshr_b32 s5, s3, 1")
    a.e("s_lshl_b32 s5, s5, 3")
    a.e("s_lshr_b32 s6, s4, 2")
    a.e("s_add_u32 s61, s5, s6")
    srd(a, SX, P_AX, 2048 * 1024)
    srd(a, SW, P_WQKV, 512 * 3072)
    WB, XB = 0, 49152
    a.e("v_lshrrev_b32 v30, 3, v1")
    a.e("s_lshl_b32 s68, s61, 6")
    a.e("s_lshl_b32 s69, s60, 4")
    a.e("s_add_u32 s68, s68, s69")
    a.e("v_add_u32 v30, s68, v30")
    a.e("v_lshlrev_b32 v30, 10, v30")
    a.e("v_and_b32 v31, 7, v1")
    a.e("v_lshrrev_b32 v32, 4, v1")
    a.e("v_xor_b32 v33, v31, v32")
    a.e("v_xor_b32 v34, 4, v33")
    a.e("v_lshlrev_b32 v33, 4, v33")
    a.e("v_lshlrev_b32 v34, 4, v34")
    a.e("v_add_u32 v35, v30, v33")
    a.e("v_add_u32 v36, v30, v34")
    a.e("v_add_u32 v36, 0x2000, v36")
    a.e("s_lshl_b32 s69, s60, 11")
    a.e(f"s_add_u32 s69, s69, {XB}")
    def issue_X(q):
        for b in range(2):
            a.e(f"s_add_u32 m0, s69, {(q % 3) * 8192 + b * 1024}")
            a.e(f"s_movk_i32 s71, {q * 128}")
            a.e(f"buffer_load_dwordx4 v{35 + b}, s[{SX}:{SX+3}], s71 offen lds"); vm.issue(f'X{q}')
    issue_X(0)
    a.e("v_lshrrev_b32 v28, 3, v1")
    a.e("v_and_b32 v29, 3, v28")
    a.e("v_lshlrev_b32 v29, 1, v29")
    a.e("v_xor_b32 v29, v31, v29")
    a.e("v_lshlrev_b32 v29, 4, v29")
    a.e("s_lshl_b32 s68, s60, 3")
    a.e("v_add_u32 v28, s68, v28")
    a.e("v_mul_u32_u24 v28, 3072, v28")
    a.e("v_add_u32 v28, v28, v29")
    a.e("s_lshl_b32 s68, s62, 7")
    a.e("v_add_u32 v28, s68, v28")
    a.e("s_lshl_b32 s70, s60, 10")
    def issue_W(s):
        for seg in range(3):
            a.e(f"s_add_u32 m0, s70, {WB + (s % 4) * 12288 + seg * 4096}")
            a.e(f"s_mov_b32 s71, {s * 32 * 3072 + seg * 1024}")
            a.e(f"buffer_load_dwordx4 v28, s[{SW}:{SW+3}], s71 offen lds"); vm.issue(f'W{s}')
    issue_W(0)
    srd(a, SWS, P_WS, WS_USED)
    srd(a, SGW, P_GW, 1024)
    a.e("v_lshlrev_b32 v7, 4, v1")
    a.e("s_lshl_b32 s64, s61, 6")
    a.e("s_lshl_b32 s65, s62, 3")
    a.e("s_add_u32 s64, s64, s65")
    a.e("s_lshl_b32 s65, s60, 1")
    a.e("s_add_u32 s64, s64, s65")
    a.e("s_lshl_b32 s67, s64, 10")
    a.e(f"buffer_load_dwordx4 v[16:19], v7, s[{SX}:{SX+3}], s67 offen"); vm.issue('prep')
    a.e(f"buffer_load_dwordx4 v[20:23], v7, s[{SX}:{SX+3}], s67 offen offset:1024"); vm.issue('prep')
    a.e(f"buffer_load_dwordx4 v[24:27], v7, s[{SGW}:{SGW+3}], 0 offen"); vm.issue('prep')
    issue_W(1); issue_X(1); issue_W(2); issue_W(3); issue_X(2)
    if os.environ.get('EPF', '1') == '1':
        a.e(f"s_lshr_b32 s14, s{idreg}, 3")
        a.e("s_and_b32 s14, s14, 31")
        a.e("s_lshl_b32 s14, s14, 2")
        a.e("s_add_u32 s14, s14, s60")
        a.e("v_lshrrev_b32 v60, 5, v1")
        a.e("v_mul_u32_u24 v60, 3072, v60")
        a.e("v_and_b32 v61, 31, v1")
        a.e("v_lshlrev_b32 v61, 4, v61")
        a.e("v_add_u32 v60, v60, v61")
        a.e(f"s_mul_i32 s15, s14, {4 * 3072}")
        a.e(f"s_and_b32 s13, s{idreg}, 1")
        a.e("s_lshl_b32 s13, s13, 9")
        a.e("s_add_u32 s15, s15, s13")
        for i in range(6):
            a.e(f"s_add_u32 s13, s15, {(i % 3) * 1024 + (i // 3) * 6144}")
            a.e(f"buffer_load_dwordx4 v[152:155], v60, s[{SW}:{SW+3}], s13 offen"); vm.issue('pf')
        a.e(f"s_lshr_b32 s13, s{idreg}, 1")
        a.e("s_and_b32 s13, s13, 3")
        a.e("s_lshl_b32 s13, s13, 19")
        a.e("s_lshl_b32 s15, s14, 12")
        a.e("s_add_u32 s15, s15, s13")
        for i in range(4):
            a.e(f"buffer_load_dwordx4 v[152:155], v7, s[{SX}:{SX+3}], s15 offen offset:{1024 * i}"); vm.issue('pf')
    a.e("v_lshrrev_b32 v37, 1, v3")
    a.e("v_and_b32 v37, 7, v37")
    a.e("v_lshlrev_b32 v38, 7, v3")
    a.e("s_and_b32 s66, s60, 1")
    a.e("s_lshl_b32 s68, s66, 12")
    a.e(f"s_add_u32 s68, s68, {XB}")
    a.e("v_add_u32 v38, s68, v38")
    for t in range(4):
        a.e(f"v_add_u32 v39, {2*t}, v4")
        a.e("v_xor_b32 v39, v39, v37")
        a.e("v_lshlrev_b32 v39, 4, v39")
        a.e(f"v_add_u32 v{40+t}, v38, v39")
        a.e(f"v_xor_b32 v{44+t}, 0x1000, v{40+t}")
    a.e("v_lshrrev_b32 v48, 1, v32")
    a.e("v_lshlrev_b32 v48, 3, v48")
    a.e("v_and_b32 v49, 15, v1")
    a.e("v_lshrrev_b32 v50, 2, v49")
    a.e("v_add_u32 v48, v48, v50")
    a.e("v_lshlrev_b32 v48, 7, v48")
    a.e("v_and_b32 v51, 3, v49")
    a.e("v_lshlrev_b32 v51, 3, v51")
    a.e("v_add_u32 v48, v48, v51")
    a.e("v_and_b32 v51, 1, v32")
    a.e("v_xor_b32 v52, s60, v50")
    a.e("v_lshlrev_b32 v52, 5, v52")
    a.e("v_lshlrev_b32 v53, 12, v51")
    a.e("v_add_u32 v52, v52, v53")
    a.e("v_add_u32 v52, v52, v48")
    a.e("s_and_b32 s68, s60, 2")
    a.e("v_add_u32 v53, s68, v51")
    a.e("v_xor_b32 v53, v53, v50")
    a.e("v_lshlrev_b32 v53, 5, v53")
    a.e("v_add_u32 v53, v53, v48")
    a.e("v_add_u32 v53, 0x2000, v53")
    ACC = 64
    for r in range(48): a.e(f"v_mov_b32 v{ACC + r}, 0")
    a.e(f"s_waitcnt vmcnt({vm.wait_for('prep')})")
    for (xr, acc) in ((16, 54), (20, 55)):
        for q in range(4):
            a.e(f"v_lshlrev_b32 v56, 16, v{xr+q}")
            a.e(f"v_and_b32 v57, 0xffff0000, v{xr+q}")
            a.e(f"v_lshlrev_b32 v58, 16, v{24+q}")
            a.e(f"v_and_b32 v59, 0xffff0000, v{24+q}")
            if q == 0: a.e(f"v_mul_f32 v{acc}, v56, v58")
            else: a.e(f"v_fmac_f32 v{acc}, v56, v58")
            a.e(f"v_fmac_f32 v{acc}, v57, v59")
    wave_sum_dpp(a, 54); wave_sum_dpp(a, 55)
    for r in (54, 55):
        a.e(f"v_mul_f32 v{r}, {f32(-1.4426950408889634)}, v{r}")
        a.e(f"v_exp_f32 v{r}, v{r}")
        a.e(f"v_add_f32 v{r}, 1.0, v{r}")
        a.e(f"v_rcp_f32 v{r}, v{r}")
    a.e("v_cmp_eq_u32 vcc, 63, v1")
    a.e("s_and_saveexec_b64 s[12:13], vcc")
    a.e("s_lshl_b32 s72, s64, 2")
    a.e(f"s_add_u32 s72, s72, {GG}")
    a.e("v_mov_b32 v56, 0")
    a.e(f"buffer_store_dwordx2 v[54:55], v56, s[{SWS}:{SWS+3}], s72 offen{sc}"); vm.issue('st')
    a.e("s_mov_b64 exec, s[12:13]")
    FR = 112
    def reads(kk):
        s, k2 = kk >> 1, kk & 1
        q, t = kk >> 2, kk & 3
        f = FR + 16 * (kk & 1)
        a.e(f"ds_read_b128 v[{f}:{f+3}], v{40+t} offset:{(q % 3) * 8192}")
        a.e(f"ds_read_b128 v[{f+4}:{f+7}], v{44+t} offset:{(q % 3) * 8192}")
        o = WB + (s % 4) * 12288 + k2 * 2048
        a.e(f"ds_read_b64_tr_b16 v[{f+8}:{f+9}], v52 offset:{o}")
        a.e(f"ds_read_b64_tr_b16 v[{f+10}:{f+11}], v52 offset:{o + 512}")
        a.e(f"ds_read_b64_tr_b16 v[{f+12}:{f+13}], v53 offset:{o}")
        a.e(f"ds_read_b64_tr_b16 v[{f+14}:{f+15}], v53 offset:{o + 512}")
    def mfmas(kk):
        f = FR + 16 * (kk & 1)
        A = [f"v[{ACC+16*s}:{ACC+16*s+15}]" for s in range(3)]
        a.e(f"v_mfma_f32_32x32x16_bf16 {A[0]}, v[{f+8}:{f+11}], v[{f}:{f+3}], {A[0]}")
        a.e(f"v_mfma_f32_32x32x16_bf16 {A[1]}, v[{f+8}:{f+11}], v[{f+4}:{f+7}], {A[1]}")
        a.e(f"v_mfma_f32_32x32x16_bf16 {A[2]}, v[{f}:{f+3}], v[{f+12}:{f+15}], {A[2]}")
    PF = []
    if prefetch:
        a.e(f"s_lshl_b32 s14, s{idreg}, 2")
        a.e("s_add_u32 s14, s14, s60")
        a.e("s_lshl_b32 s14, s14, 10")
        a.e("s_add_u32 s15, s14, 0x100000")
        for i, (ptr, nb) in enumerate(((P_WG, 512 * 2752), (P_WU, 512 * 2752), (P_WD, 1376 * 1024), (P_WO, 512 * 1024))):
            PF.append((ptr, nb, 14))
            if nb > 0x100000: PF.append((ptr, nb, 15))
    def prefetch_one(i):
        ptr, nb, so = PF[i]
        srd(a, 8, ptr, nb)
        a.e(f"buffer_load_dwordx4 v[152:155], v7, s[8:11], s{so} offen"); vm.issue('pf')
    if st: st.stamp()
    for s in range(16):
        tags = [f'W{s}'] + ([f'X{s >> 1}'] if s % 2 == 0 else [])
        a.e(f"s_waitcnt vmcnt({vm.wait_for(*tags)}) lgkmcnt(0)")
        a.e("s_barrier")
        if s in (0, 8) and st: st.stamp()
        reads(2 * s)
        if s > 0: mfmas(2 * s - 1)
        if s >= 1 and s + 3 < 16: issue_W(s + 3)
        if s >= 2 and s % 2 == 0 and (s - 2) // 2 + 3 < 8: issue_X((s - 2) // 2 + 3)
        if s == 13:
            for i in range(len(PF)): prefetch_one(i)
        if hook: hook(s, vm)
        a.e("s_waitcnt lgkmcnt(0)")
        reads(2 * s + 1)
        mfmas(2 * s)
    a.e("s_waitcnt lgkmcnt(0)")
    mfmas(31)
    if st: st.stamp()
    a.e("s_lshl_b32 s63, s62, 2")
    a.e("s_add_u32 s63, s63, s60")
    a.e("s_lshl_b32 s64, s61, 1")
    a.e("s_add_u32 s65, s64, s66")
    a.e("s_xor_b32 s66, s65, 1")
    a.e(f"s_mov_b32 s72, {f32(C_SCALE)}")
    a.e("s_lshl_b32 s73, s63, 6")
    for i, stt in enumerate((65, 66)):
        A = ACC + 16 * i; T = FR + 16 * i
        for r in range(8): a.e(f"v_mul_f32 v{A+r}, s72, v{A+r}")
        for p in range(4): a.e(f"v_cvt_pk_bf16_f32 v{T+p}, v{A+2*p}, v{A+2*p+1}")
        for p in range(4): a.e(f"v_cvt_pk_bf16_f32 v{T+4+p}, v{A+8+2*p}, v{A+8+2*p+1}")
        a.e(f"s_add_u32 s74, s73, s{stt}")
        a.e("s_lshl_b32 s75, s74, 10")
        a.e(f"s_add_u32 s75, s75, {QF}")
        a.e(f"buffer_store_dwordx4 v[{T}:{T+3}], v7, s[{SWS}:{SWS+3}], s75 offen{sc}")
        a.e("s_lshl_b32 s75, s74, 11")
        a.e(f"s_add_u32 s75, s75, {KVF}")
        a.e(f"buffer_store_dwordx4 v[{T+4}:{T+7}], v7, s[{SWS}:{SWS+3}], s75 offen{sc}")
        n = 54 + i
        a.e(f"v_mul_f32 v{n}, v{A+8}, v{A+8}")
        for r in range(1, 8): a.e(f"v_fmac_f32 v{n}, v{A+8+r}, v{A+8+r}")
        a.e(f"v_mov_b32 v56, v{n}")
        a.e(f"v_permlane32_swap_b32 v{n}, v56")
        a.e(f"v_add_f32 v{n}, v{n}, v56")
        wave_max_dpp(a, n)
        a.e("v_cmp_eq_u32 vcc, 31, v1")
        a.e("s_and_saveexec_b64 s[12:13], vcc")
        a.e("s_lshl_b32 s75, s74, 2")
        a.e(f"s_add_u32 s75, s75, {KMAX}")
        a.e("v_mov_b32 v56, 0")
        a.e(f"buffer_store_dword v{n}, v56, s[{SWS}:{SWS+3}], s75 offen{sc}")
        a.e("s_mov_b64 exec, s[12:13]")
    VA = ACC + 32; T = FR + 8
    for p in range(8): a.e(f"v_cvt_pk_bf16_f32 v{T+p}, v{VA+2*p}, v{VA+2*p+1}") if False else None
    T = 96 + 16
    T = 144
    for p in range(8): a.e(f"v_cvt_pk_bf16_f32 v{T+p}, v{VA+2*p}, v{VA+2*p+1}")
    a.e("v_lshrrev_b32 v56, 4, v1")
    a.e("v_and_b32 v56, 1, v56")
    a.e("v_lshlrev_b32 v56, 17, v56")
    a.e("v_lshlrev_b32 v57, 8, v4")
    a.e("v_add_u32 v56, v56, v57")
    a.e("v_and_b32 v57, 15, v1")
    a.e("v_lshlrev_b32 v57, 4, v57")
    a.e("v_add_u32 v56, v56, v57")
    a.e("s_lshl_b32 s74, s62, 2")
    a.e("s_and_b32 s75, s60, 2")
    a.e("s_add_u32 s74, s74, s75")
    a.e("s_lshl_b32 s74, s74, 6")
    a.e("s_add_u32 s74, s74, s65")
    a.e("s_lshl_b32 s74, s74, 11")
    a.e(f"s_add_u32 s74, s74, {KVF}")
    a.e(f"buffer_store_dwordx4 v[{T}:{T+3}], v56, s[{SWS}:{SWS+3}], s74 offen offset:1024{sc}")
    a.e(f"buffer_store_dwordx4 v[{T+4}:{T+7}], v56, s[{SWS}:{SWS+3}], s74 offen offset:1536{sc}")

def gen_k1b(a, label):
    kernel_head(a, label)
    a.e("s_cmp_ge_u32 s2, 0x100")
    a.e(f"s_cbranch_scc1 {label}_end")
    st = Stamper(a); st.real(76); st.stamp()
    load_ptrs(a)
    a.e("s_waitcnt lgkmcnt(0)")
    gen_qkv(a, label, 2, st)
    a.e("s_cmp_lg_u32 s2, 0")
    a.e(f"s_cbranch_scc1 {label}_nocnt")
    a.e("s_cmp_lg_u32 s60, 0")
    a.e(f"s_cbranch_scc1 {label}_nocnt")
    a.m(f"""
    v_mov_b32 v48, 0
    v_mov_b32 v49, 0
    v_mov_b32 v50, 0
    v_mov_b32 v51, 0
    s_mov_b32 s72, {CNT}
    buffer_store_dwordx4 v[48:51], v7, s[48:51], s72 offen
    buffer_store_dwordx4 v[48:51], v7, s[48:51], s72 offen offset:1024
    buffer_store_dwordx4 v[48:51], v7, s[48:51], s72 offen offset:2048
    buffer_store_dwordx4 v[48:51], v7, s[48:51], s72 offen offset:3072
    """)
    a.label(f"{label}_nocnt")
    if STAMPS:
        a.e("s_waitcnt vmcnt(0)")
        st.stamp(); st.real(94); st.dump(48, 2, 60, 0, vtmp=20, name=label)
    a.label(f"{label}_end")
    a.e("s_endpgm")
    return kernel_desc(label, 160)
```

```python
from common import *
import k2b, k2g, os

SPIN_MAX = 1 << 16

def signal(a, L, cnt_off_sgpr, SWS=48, gate=None):
    a.e("s_waitcnt vmcnt(0)")
    a.e("s_barrier")
    a.e("s_cmp_lg_u32 s60, 0")
    a.e(f"s_cbranch_scc1 {L}_nosig")
    if gate:
        vf, sd = gate
        a.e("s_mov_b32 s58, 0")
        a.label(f"{L}_gate")
        a.e(f"v_readfirstlane_b32 s57, v{vf}")
        a.e("s_cmp_lg_u32 s57, 0")
        a.e(f"s_cbranch_scc1 {L}_gateok")
        a.e("v_mov_b32 v6, 0")
        a.e(f"buffer_load_dword v{vf}, v6, s[{sd}:{sd+3}], 0 offen sc0 sc1")
        a.e("s_waitcnt vmcnt(0)")
        a.e("s_add_u32 s58, s58, 1")
        a.e(f"s_cmp_lt_u32 s58, {SPIN_MAX}")
        a.e(f"s_cbranch_scc1 {L}_gate")
        a.label(f"{L}_gateok")
        a.flush_hist()
    a.e("v_mov_b32 v6, 0")
    a.e("v_mov_b32 v7, 1")
    a.e("s_mov_b64 exec, 1")
    a.e(f"buffer_atomic_add v7, v6, s[{SWS}:{SWS+3}], s{cnt_off_sgpr} offen sc1")
    a.e("s_mov_b64 exec, -1")
    a.label(f"{L}_nosig")
    a.flush_hist()

def wait_cnt(a, L, cnt_off_sgpr, target, SWS=48, two=False):
    a.e("s_cmp_lg_u32 s60, 0")
    a.e(f"s_cbranch_scc1 {L}_wdone")
    a.e("v_mov_b32 v6, 0")
    a.e("s_mov_b32 s58, 0")
    a.label(f"{L}_poll")
    a.e(f"buffer_load_dword v7, v6, s[{SWS}:{SWS+3}], s{cnt_off_sgpr} offen sc0 sc1")
    if two: a.e(f"buffer_load_dword v9, v6, s[{SWS}:{SWS+3}], s{cnt_off_sgpr} offen offset:{two} sc0 sc1")
    a.e("s_waitcnt vmcnt(0)")
    if two: a.e("v_min_u32 v7, v7, v9")
    a.e("v_readfirstlane_b32 s57, v7")
    a.e(f"s_cmp_ge_u32 s57, {target}")
    a.e(f"s_cbranch_scc1 {L}_wdone")
    a.e("s_add_u32 s58, s58, 1")
    a.e(f"s_cmp_lt_u32 s58, {SPIN_MAX}")
    a.e(f"s_cbranch_scc1 {L}_poll")
    a.label(f"{L}_wdone")
    a.flush_hist()
    a.e("s_barrier")

def gen_k2(a, label):
    kernel_head(a, label)
    a.e("s_cmp_ge_u32 s2, 0x200")
    a.e(f"s_cbranch_scc1 {label}_end")
    load_ptrs(a)
    st = Stamper(a); st.real(76); st.stamp()
    a.e("s_cmp_ge_u32 s2, 0x100")
    a.e(f"s_cbranch_scc1 {label}_G")
    a.e("s_waitcnt lgkmcnt(0)")
    k2b.gen_attn2(a, label + "_A", 2, st, prio=int(os.environ.get('APRIO', '2')))
    if STAMPS:
        a.e("s_waitcnt vmcnt(0)")
        st.stamp(); st.real(94); st.dump(48, 2, 60, 1, vtmp=20, name=label)
    a.e("s_endpgm")
    a.flush_hist()
    a.label(f"{label}_G")
    st2 = Stamper(a); st2.n = 1
    a.e("s_sub_u32 s56, s2, 0x100")
    if os.environ.get('GPRIO'): a.e(f"s_setprio {os.environ['GPRIO']}")
    a.e("s_waitcnt lgkmcnt(0)")
    k2g.gen_up(a, label + "_U", 56, st2, sc=" sc0 sc1")
    a.e("s_lshl_b32 s59, s61, 6")
    a.e(f"s_add_u32 s59, s59, {CNT}")
    signal(a, label + "_S", 59)
    st2.stamp()
    a.e("s_and_b32 s61, s56, 7")
    a.e("s_lshl_b32 s61, s61, 2")
    a.e("s_lshr_b32 s62, s56, 3")
    a.e("s_and_b32 s62, s62, 3")
    a.e("s_add_u32 s61, s61, s62")
    a.e("s_lshr_b32 s61, s61, 1")
    a.e("s_lshl_b32 s59, s61, 6")
    a.e(f"s_add_u32 s59, s59, {CNT}")
    wait_cnt(a, label + "_W", 59, 16)
    st2.stamp()
    k2g.gen_splitk(a, label + "_D", 'down', 56, None, sc_ld=" sc0 sc1")
    if STAMPS:
        a.e("s_waitcnt vmcnt(0)")
        st2.stamp(); st2.real(94); st2.dump(48, 2, 60, 1, vtmp=14, name=label + "_g")
    a.label(f"{label}_end")
    a.e("s_endpgm")
    return kernel_desc(label, 176)

CU, CA, CB = CNT, CNT + 2048, CNT + 3072

def gen_k2f(a, label):
    import k2g
    kernel_head(a, label)
    a.e("s_cmp_ge_u32 s2, 0x200")
    a.e(f"s_cbranch_scc1 {label}_end")
    load_ptrs(a)
    st = Stamper(a); st.real(76); st.stamp()
    a.e("s_cmp_ge_u32 s2, 0x100")
    a.e(f"s_cbranch_scc1 {label}_G")
    a.e("s_waitcnt lgkmcnt(0)")
    k2b.gen_attn2(a, label + "_A", 2, st, prio=int(os.environ.get('APRIO', '1')), sc=" sc0 sc1", mid=False)
    a.e("s_lshl_b32 s59, s62, 7")
    a.e(f"s_add_u32 s59, s59, {CA}")
    signal(a, label + "_SA", 59)
    if st: st.stamp()
    a.e("s_mov_b32 s54, s61")
    a.e("s_mov_b32 s55, s62")
    k2g.lane_setup(a)
    def tile():
        a.e("s_lshl_b32 s61, s55, 2")
        a.e("s_lshr_b32 s62, s54, 3")
        a.e("s_add_u32 s61, s61, s62")
        a.e("s_and_b32 s62, s54, 7")
    def waitf():
        wait_cnt(a, label + "_WA", 59, 32, two=CB - CA)
        if st: st.stamp()
    k2g.gen_splitk(a, label + "_O", 'wo', 2, None, sc_ld=" sc0 sc1", wait_fn=waitf, tile_fn=tile)
    if STAMPS:
        a.e("s_waitcnt vmcnt(0)")
        st.stamp(); st.real(94); st.dump(48, 2, 60, 1, vtmp=14, name=label)
    a.e("s_endpgm")
    a.flush_hist()
    a.label(f"{label}_G")
    st2 = Stamper(a); st2.n = 1
    a.e("s_sub_u32 s56, s2, 0x100")
    a.e("s_waitcnt lgkmcnt(0)")
    k2g.gen_up(a, label + "_U", 56, st2, sc=" sc0 sc1")
    a.e("s_lshl_b32 s59, s61, 7")
    a.e(f"s_add_u32 s59, s59, {CU}")
    signal(a, label + "_S", 59)
    st2.stamp()
    a.e("s_and_b32 s61, s56, 7")
    a.e("s_lshl_b32 s61, s61, 2")
    a.e("s_lshr_b32 s62, s56, 3")
    a.e("s_and_b32 s62, s62, 3")
    a.e("s_add_u32 s61, s61, s62")
    a.e("s_lshr_b32 s55, s61, 2")
    a.e("s_lshr_b32 s61, s61, 1")
    a.e("s_lshl_b32 s59, s61, 7")
    a.e(f"s_add_u32 s59, s59, {CU}")
    def waitg():
        wait_cnt(a, label + "_W", 59, 16)
        st2.stamp()
    k2g.gen_splitk(a, label + "_D", 'down', 56, None, sc_ld=" sc0 sc1", sc_st=" sc0 sc1", wait_fn=waitg)
    a.e("s_lshl_b32 s59, s55, 7")
    a.e(f"s_add_u32 s59, s59, {CB}")
    signal(a, label + "_SB", 59)
    if STAMPS:
        st2.stamp(); st2.stamp(); st2.real(94); st2.dump(48, 2, 60, 1, vtmp=14, name=label + "_g")
    a.label(f"{label}_end")
    a.e("s_endpgm")
    return kernel_desc(label, 176)

CQ = CNT + 4096
def gen_fused(a, label):
    import k2g, k1b
    SCL = os.environ.get('SCL', ' sc0 sc1')
    kernel_head(a, label)
    a.e("s_cmp_ge_u32 s2, 0x200")
    a.e(f"s_cbranch_scc1 {label}_end")
    load_ptrs(a)
    a.e("s_load_dwordx2 s[36:37], s[0:1], 72")
    st = Stamper(a); st.real(76); st.stamp()
    SD = 96
    a.e("s_cmp_ge_u32 s2, 0x100")
    a.e(f"s_cbranch_scc1 {label}_G")
    a.e("s_waitcnt lgkmcnt(0)")
    a.e("s_setprio 2")
    srd(a, SD, 36, 256)
    def flag_load(vf):
        def h(s, vm):
            if s == 14:
                a.e(f"v_mov_b32 v{vf}, 0")
                a.e(f"buffer_load_dword v{vf}, v{vf}, s[{SD}:{SD+3}], 0 offen sc0 sc1"); vm.issue('pf')
        return h
    k1b.gen_qkv(a, label + "_Q", 2, None, sc=" sc0 sc1", prefetch=False, hook=flag_load(156))
    a.e("s_lshl_b32 s59, s62, 7")
    a.e(f"s_add_u32 s59, s59, {CQ}")
    signal(a, label + "_SQ", 59, gate=(156, SD))
    st.stamp()
    a.e("s_and_b32 s59, s2, 7")
    a.e("s_lshl_b32 s59, s59, 7")
    a.e(f"s_add_u32 s59, s59, {CQ}")
    wait_cnt(a, label + "_WQ", 59, 32)
    st.stamp()
    k2b.gen_attn2(a, label + "_A", 2, None, prio=int(os.environ.get('APRIO', '1')), sc=" sc0 sc1", mid=False, scl=SCL)
    st.stamp()
    a.e("s_lshl_b32 s59, s62, 7")
    a.e(f"s_add_u32 s59, s59, {CA}")
    signal(a, label + "_SA", 59)
    st.stamp()
    a.e("s_mov_b32 s54, s61")
    a.e("s_mov_b32 s55, s62")
    k2g.lane_setup(a)
    def tile():
        a.e("s_lshl_b32 s61, s55, 2")
        a.e("s_lshr_b32 s62, s54, 3")
        a.e("s_add_u32 s61, s61, s62")
        a.e("s_and_b32 s62, s54, 7")
    def waitf():
        wait_cnt(a, label + "_WA", 59, 32, two=CB - CA)
        st.stamp()
    k2g.gen_splitk(a, label + "_O", 'wo', 2, None, sc_ld=" sc0 sc1", wait_fn=waitf, tile_fn=tile)
    if STAMPS:
        a.e("s_waitcnt vmcnt(0)")
        st.stamp(); st.real(94); st.dump(48, 2, 60, 0, vtmp=14, name=label)
    a.e("s_endpgm")
    a.flush_hist()
    a.label(f"{label}_G")
    st2 = Stamper(a); st2.n = 1
    a.e("s_sub_u32 s56, s2, 0x100")
    a.e("s_waitcnt lgkmcnt(0)")
    srd(a, SD, 36, 256)
    a.e("s_cmp_lg_u32 s56, 0")
    a.e(f"s_cbranch_scc1 {label}_noinit")
    a.e("v_cmp_gt_u32 vcc, 64, v0")
    a.e("s_cbranch_vccz " + f"{label}_noinit")
    srd(a, 48, P_WS, WS_USED)
    a.e("v_lshlrev_b32 v7, 4, v0")
    for r in range(4): a.e(f"v_mov_b32 v{8 + r}, 0")
    a.e(f"s_mov_b32 s59, {CNT}")
    for i in range(4): a.e(f"buffer_store_dwordx4 v[8:11], v7, s[48:51], s59 offen offset:{1024 * i} sc0 sc1")
    a.e(f"s_mov_b32 s59, {CNT + 4096}")
    a.e(f"buffer_store_dwordx4 v[8:11], v7, s[48:51], s59 offen sc0 sc1")
    a.e("s_waitcnt vmcnt(0)")
    a.e("v_mov_b32 v8, 1")
    a.e("v_mov_b32 v7, 0")
    a.e("s_mov_b64 exec, 1")
    a.e(f"buffer_store_dword v8, v7, s[{SD}:{SD+3}], 0 offen sc0 sc1")
    a.e("s_mov_b64 exec, -1")
    a.label(f"{label}_noinit")
    a.flush_hist()
    def ghook(s, vm):
        if s == 13:
            a.e("s_lshl_b32 s14, s56, 2")
            a.e("s_add_u32 s14, s14, s60")
            a.e("s_lshl_b32 s14, s14, 10")
            a.e("s_add_u32 s15, s14, 0x100000")
            srd(a, 8, P_WD, 1376 * 1024)
            a.e("buffer_load_dwordx4 v[172:175], v5, s[8:11], s14 offen"); vm.issue('pf')
            a.e("buffer_load_dwordx4 v[172:175], v5, s[8:11], s15 offen"); vm.issue('pf')
            srd(a, 8, P_WO, 512 * 1024)
            a.e("buffer_load_dwordx4 v[172:175], v5, s[8:11], s14 offen"); vm.issue('pf')
        if s == 14:
            a.e("v_mov_b32 v13, 0")
            a.e(f"buffer_load_dword v13, v13, s[{SD}:{SD+3}], 0 offen sc0 sc1"); vm.issue('pf')
    k2g.gen_up(a, label + "_U", 56, st2, sc=" sc0 sc1", hook=ghook)
    a.e("s_lshl_b32 s59, s61, 7")
    a.e(f"s_add_u32 s59, s59, {CU}")
    signal(a, label + "_S", 59, gate=(13, SD))
    st2.stamp()
    a.e("s_and_b32 s61, s56, 7")
    a.e("s_lshl_b32 s61, s61, 2")
    a.e("s_lshr_b32 s62, s56, 3")
    a.e("s_and_b32 s62, s62, 3")
    a.e("s_add_u32 s61, s61, s62")
    a.e("s_lshr_b32 s55, s61, 2")
    a.e("s_lshr_b32 s61, s61, 1")
    a.e("s_lshl_b32 s59, s61, 7")
    a.e(f"s_add_u32 s59, s59, {CU}")
    def waitg():
        wait_cnt(a, label + "_W", 59, 16)
        st2.stamp()
    k2g.gen_splitk(a, label + "_D", 'down', 56, None, sc_ld=" sc0 sc1", sc_st=" sc0 sc1", wait_fn=waitg)
    a.e("s_lshl_b32 s59, s55, 7")
    a.e(f"s_add_u32 s59, s59, {CB}")
    signal(a, label + "_SB", 59)
    if STAMPS:
        st2.stamp(); st2.stamp(); st2.real(94); st2.dump(48, 2, 60, 0, vtmp=14, name=label + "_g")
    a.label(f"{label}_end")
    a.e("s_endpgm")
    return kernel_desc(label, 176, sgpr=100)


def g_role(a, label, SD=None, ghook=None, dump_k=1):
    st2 = Stamper(a); st2.n = 1
    k2g.gen_up(a, label + "_U", 56, st2, sc=" sc0 sc1", hook=ghook)
    a.e("s_lshl_b32 s59, s61, 7")
    a.e(f"s_add_u32 s59, s59, {CU}")
    signal(a, label + "_S", 59, gate=(13, SD) if SD else None)
    st2.stamp()
    a.e("s_and_b32 s3, s56, 7")
    a.e("s_lshl_b32 s3, s3, 2")
    a.e("s_lshr_b32 s55, s56, 3")
    a.e("s_and_b32 s55, s55, 3")
    a.e("s_add_u32 s3, s3, s55")
    a.e("s_lshr_b32 s55, s3, 2")
    a.e("s_lshr_b32 s3, s3, 1")
    a.e("s_lshl_b32 s59, s3, 7")
    a.e(f"s_add_u32 s59, s59, {CU}")
    a.e("s_lshl_b32 s3, s55, 7")
    a.e(f"s_add_u32 s3, s3, {CA}")
    def wu():
        wait_cnt(a, label + "_W", 59, 16)
        st2.stamp()
    def wa():
        wait_cnt(a, label + "_WA", 3, 32)
        st2.stamp()
    k2g.gen_dw(a, label + "_D", 56, wu, wa, st=None if not STAMPS else None)
    if STAMPS:
        a.e("s_waitcnt vmcnt(0)")
        st2.stamp(); st2.real(94); st2.dump(48, 2, 60, dump_k, vtmp=14, name=label + "_g")

def gen_k2h(a, label):
    kernel_head(a, label)
    a.e("s_cmp_ge_u32 s2, 0x200")
    a.e(f"s_cbranch_scc1 {label}_end")
    load_ptrs(a)
    st = Stamper(a); st.real(76); st.stamp()
    a.e("s_cmp_ge_u32 s2, 0x100")
    a.e(f"s_cbranch_scc1 {label}_G")
    a.e("s_waitcnt lgkmcnt(0)")
    k2b.gen_attn2(a, label + "_A", 2, st, prio=int(os.environ.get('APRIO', '1')), sc=" sc0 sc1", mid=False)
    a.e("s_lshl_b32 s59, s62, 7")
    a.e(f"s_add_u32 s59, s59, {CA}")
    signal(a, label + "_SA", 59)
    if STAMPS:
        st.stamp(); st.stamp(); st.real(94); st.dump(48, 2, 60, 1, vtmp=14, name=label)
    a.e("s_endpgm")
    a.flush_hist()
    a.label(f"{label}_G")
    a.e("s_sub_u32 s56, s2, 0x100")
    a.e("s_waitcnt lgkmcnt(0)")
    g_role(a, label)
    a.label(f"{label}_end")
    a.e("s_endpgm")
    return kernel_desc(label, 176)

def gen_fused2(a, label):
    import k1b
    SCL = os.environ.get('SCL', ' sc0 sc1')
    kernel_head(a, label)
    a.e("s_cmp_ge_u32 s2, 0x200")
    a.e(f"s_cbranch_scc1 {label}_end")
    load_ptrs(a)
    a.e("s_load_dwordx2 s[36:37], s[0:1], 72")
    st = Stamper(a); st.real(76); st.stamp()
    SD = 96
    a.e("s_cmp_ge_u32 s2, 0x100")
    a.e(f"s_cbranch_scc1 {label}_G")
    a.e("s_waitcnt lgkmcnt(0)")
    a.e("s_setprio 2")
    srd(a, SD, 36, 256)
    def flag_load(vf):
        def h(s, vm):
            if s == 14:
                a.e(f"v_mov_b32 v{vf}, 0")
                a.e(f"buffer_load_dword v{vf}, v{vf}, s[{SD}:{SD+3}], 0 offen sc0 sc1"); vm.issue('pf')
        return h
    k1b.gen_qkv(a, label + "_Q", 2, None, sc=" sc0 sc1", prefetch=False, hook=flag_load(156))
    a.e("s_lshl_b32 s59, s62, 7")
    a.e(f"s_add_u32 s59, s59, {CQ}")
    signal(a, label + "_SQ", 59, gate=(156, SD))
    st.stamp()
    a.e("s_and_b32 s59, s2, 7")
    a.e("s_lshl_b32 s59, s59, 7")
    a.e(f"s_add_u32 s59, s59, {CQ}")
    wait_cnt(a, label + "_WQ", 59, 32)
    st.stamp()
    k2b.gen_attn2(a, label + "_A", 2, None, prio=int(os.environ.get('APRIO', '1')), sc=" sc0 sc1", mid=False, scl=SCL)
    st.stamp()
    a.e("s_lshl_b32 s59, s62, 7")
    a.e(f"s_add_u32 s59, s59, {CA}")
    signal(a, label + "_SA", 59)
    if STAMPS:
        st.stamp(); st.stamp(); st.real(94); st.dump(48, 2, 60, 0, vtmp=14, name=label)
    a.e("s_endpgm")
    a.flush_hist()
    a.label(f"{label}_G")
    a.e("s_sub_u32 s56, s2, 0x100")
    a.e("s_waitcnt lgkmcnt(0)")
    srd(a, SD, 36, 256)
    a.e("s_cmp_lg_u32 s56, 0")
    a.e(f"s_cbranch_scc1 {label}_noinit")
    a.e("v_cmp_gt_u32 vcc, 64, v0")
    a.e("s_cbranch_vccz " + f"{label}_noinit")
    srd(a, 48, P_WS, WS_USED)
    a.e("v_lshlrev_b32 v7, 4, v0")
    for r in range(4): a.e(f"v_mov_b32 v{8 + r}, 0")
    a.e(f"s_mov_b32 s59, {CNT}")
    for i in range(4): a.e(f"buffer_store_dwordx4 v[8:11], v7, s[48:51], s59 offen offset:{1024 * i} sc0 sc1")
    a.e(f"s_mov_b32 s59, {CNT + 4096}")
    a.e(f"buffer_store_dwordx4 v[8:11], v7, s[48:51], s59 offen sc0 sc1")
    a.e("s_waitcnt vmcnt(0)")
    a.e("v_mov_b32 v8, 1")
    a.e("v_mov_b32 v7, 0")
    a.e("s_mov_b64 exec, 1")
    a.e(f"buffer_store_dword v8, v7, s[{SD}:{SD+3}], 0 offen sc0 sc1")
    a.e("s_mov_b64 exec, -1")
    a.label(f"{label}_noinit")
    a.flush_hist()
    def ghook(s, vm):
        if s == 0 and os.environ.get('GPF', '1') == '1':
            a.e("s_lshl_b32 s14, s56, 2")
            a.e("s_add_u32 s14, s14, s60")
            a.e("s_lshl_b32 s14, s14, 10")
            a.e("s_add_u32 s15, s14, 0x100000")
            for ptr in (P_WG, P_WU):
                srd(a, 8, ptr, 512 * 2752)
                a.e("buffer_load_dwordx4 v[172:175], v5, s[8:11], s14 offen"); vm.issue('pf')
                a.e("buffer_load_dwordx4 v[172:175], v5, s[8:11], s15 offen"); vm.issue('pf')
        if s == 13:
            a.e("s_lshl_b32 s14, s56, 2")
            a.e("s_add_u32 s14, s14, s60")
            a.e("s_lshl_b32 s14, s14, 10")
            a.e("s_add_u32 s15, s14, 0x100000")
            srd(a, 8, P_WD, 1376 * 1024)
            a.e("buffer_load_dwordx4 v[172:175], v5, s[8:11], s14 offen"); vm.issue('pf')
            a.e("buffer_load_dwordx4 v[172:175], v5, s[8:11], s15 offen"); vm.issue('pf')
            srd(a, 8, P_WO, 512 * 1024)
            a.e("buffer_load_dwordx4 v[172:175], v5, s[8:11], s14 offen"); vm.issue('pf')
        if s == 14:
            a.e("v_mov_b32 v13, 0")
            a.e(f"buffer_load_dword v13, v13, s[{SD}:{SD+3}], 0 offen sc0 sc1"); vm.issue('pf')
    g_role(a, label, SD=SD, ghook=ghook, dump_k=0)
    a.label(f"{label}_end")
    a.e("s_endpgm")
    return kernel_desc(label, 176, sgpr=100)
```

```python
from common import *
import os
C_SCALE = 0.25 * 1.4426950408889634

def gen_qkv(a, L, idreg, st=None, sc="", prefetch=True, hook=None):
    vm = VM()
    SX, SW, SWS, SGW = 40, 44, 48, 56
    a.e("v_and_b32 v1, 63, v0")
    a.e("v_lshrrev_b32 v2, 6, v0")
    a.e("v_readfirstlane_b32 s60, v2")
    a.e("v_and_b32 v3, 31, v1")
    a.e("v_lshrrev_b32 v4, 5, v1")
    a.e(f"s_and_b32 s3, s{idreg}, 7")
    a.e(f"s_lshr_b32 s4, s{idreg}, 3")
    a.e("s_and_b32 s5, s3, 1")
    a.e("s_lshl_b32 s5, s5, 2")
    a.e("s_and_b32 s6, s4, 3")
    a.e("s_add_u32 s62, s5, s6")
    a.e("s_lshr_b32 s5, s3, 1")
    a.e("s_lshl_b32 s5, s5, 3")
    a.e("s_lshr_b32 s6, s4, 2")
    a.e("s_add_u32 s61, s5, s6")
    srd(a, SX, P_AX, 2048 * 1024)
    srd(a, SW, P_WQKV, 512 * 3072)
    WB, XB = 0, 49152
    a.e("v_lshrrev_b32 v30, 3, v1")
    a.e("s_lshl_b32 s68, s61, 6")
    a.e("s_lshl_b32 s69, s60, 4")
    a.e("s_add_u32 s68, s68, s69")
    a.e("v_add_u32 v30, s68, v30")
    a.e("v_lshlrev_b32 v30, 10, v30")
    a.e("v_and_b32 v31, 7, v1")
    a.e("v_lshrrev_b32 v32, 4, v1")
    a.e("v_xor_b32 v33, v31, v32")
    a.e("v_xor_b32 v34, 4, v33")
    a.e("v_lshlrev_b32 v33, 4, v33")
    a.e("v_lshlrev_b32 v34, 4, v34")
    a.e("v_add_u32 v35, v30, v33")
    a.e("v_add_u32 v36, v30, v34")
    a.e("v_add_u32 v36, 0x2000, v36")
    a.e("s_lshl_b32 s69, s60, 11")
    a.e(f"s_add_u32 s69, s69, {XB}")
    def issue_X(q):
        for b in range(2):
            a.e(f"s_add_u32 m0, s69, {(q % 3) * 8192 + b * 1024}")
            a.e(f"s_movk_i32 s71, {q * 128}")
            a.e(f"buffer_load_dwordx4 v{35 + b}, s[{SX}:{SX+3}], s71 offen lds"); vm.issue(f'X{q}')
    issue_X(0)
    a.e("v_lshrrev_b32 v28, 3, v1")
    a.e("v_and_b32 v29, 3, v28")
    a.e("v_lshlrev_b32 v29, 1, v29")
    a.e("v_xor_b32 v29, v31, v29")
    a.e("v_lshlrev_b32 v29, 4, v29")
    a.e("s_lshl_b32 s68, s60, 3")
    a.e("v_add_u32 v28, s68, v28")
    a.e("v_mul_u32_u24 v28, 3072, v28")
    a.e("v_add_u32 v28, v28, v29")
    a.e("s_lshl_b32 s68, s62, 7")
    a.e("v_add_u32 v28, s68, v28")
    a.e("s_lshl_b32 s70, s60, 10")
    def issue_W(s):
        for seg in range(3):
            a.e(f"s_add_u32 m0, s70, {WB + (s % 4) * 12288 + seg * 4096}")
            a.e(f"s_mov_b32 s71, {s * 32 * 3072 + seg * 1024}")
            a.e(f"buffer_load_dwordx4 v28, s[{SW}:{SW+3}], s71 offen lds"); vm.issue(f'W{s}')
    issue_W(0)
    srd(a, SWS, P_WS, WS_USED)
    srd(a, SGW, P_GW, 1024)
    a.e("v_lshlrev_b32 v7, 4, v1")
    a.e("s_lshl_b32 s64, s61, 6")
    a.e("s_lshl_b32 s65, s62, 3")
    a.e("s_add_u32 s64, s64, s65")
    a.e("s_lshl_b32 s65, s60, 1")
    a.e("s_add_u32 s64, s64, s65")
    a.e("s_lshl_b32 s67, s64, 10")
    a.e(f"buffer_load_dwordx4 v[16:19], v7, s[{SX}:{SX+3}], s67 offen"); vm.issue('prep')
    a.e(f"buffer_load_dwordx4 v[20:23], v7, s[{SX}:{SX+3}], s67 offen offset:1024"); vm.issue('prep')
    a.e(f"buffer_load_dwordx4 v[24:27], v7, s[{SGW}:{SGW+3}], 0 offen"); vm.issue('prep')
    issue_W(1); issue_X(1); issue_W(2); issue_W(3); issue_X(2)
    if os.environ.get('EPF', '1') == '1':
        a.e(f"s_lshr_b32 s14, s{idreg}, 3")
        a.e("s_and_b32 s14, s14, 31")
        a.e("s_lshl_b32 s14, s14, 2")
        a.e("s_add_u32 s14, s14, s60")
        a.e("v_lshrrev_b32 v60, 5, v1")
        a.e("v_mul_u32_u24 v60, 3072, v60")
        a.e("v_and_b32 v61, 31, v1")
        a.e("v_lshlrev_b32 v61, 4, v61")
        a.e("v_add_u32 v60, v60, v61")
        a.e(f"s_mul_i32 s15, s14, {4 * 3072}")
        a.e(f"s_and_b32 s13, s{idreg}, 1")
        a.e("s_lshl_b32 s13, s13, 9")
        a.e("s_add_u32 s15, s15, s13")
        for i in range(6):
            a.e(f"s_add_u32 s13, s15, {(i % 3) * 1024 + (i // 3) * 6144}")
            a.e(f"buffer_load_dwordx4 v[152:155], v60, s[{SW}:{SW+3}], s13 offen"); vm.issue('pf')
        a.e(f"s_lshr_b32 s13, s{idreg}, 1")
        a.e("s_and_b32 s13, s13, 3")
        a.e("s_lshl_b32 s13, s13, 19")
        a.e("s_lshl_b32 s15, s14, 12")
        a.e("s_add_u32 s15, s15, s13")
        for i in range(4):
            a.e(f"buffer_load_dwordx4 v[152:155], v7, s[{SX}:{SX+3}], s15 offen offset:{1024 * i}"); vm.issue('pf')
    if os.environ.get('TPF', '0') == '1':
        a.e("v_mov_b32 v62, 0")
        a.e("s_lshl_b32 s13, s60, 21")
        a.e(f"s_add_u32 s13, s13, {HF}")
        a.e(f"buffer_load_dword v156, v62, s[{SWS}:{SWS+3}], s13 offen"); vm.issue('pf')
        srd(a, 8, P_OUT, 2048 * 1024)
        a.e("s_lshl_b32 s13, s60, 19")
        a.e("buffer_load_dword v156, v62, s[8:11], s13 offen"); vm.issue('pf')
        a.e("s_and_b32 s13, s60, 1")
        a.e("s_lshl_b32 s13, s13, 20")
        for ptr, nb in ((P_WG, 512 * 2752), (P_WU, 512 * 2752), (P_WD, 1376 * 1024)):
            srd(a, 8, ptr, nb)
            a.e("buffer_load_dword v156, v62, s[8:11], s13 offen"); vm.issue('pf')
        srd(a, 8, P_WO, 512 * 1024)
        a.e("buffer_load_dword v156, v62, s[8:11], 0 offen"); vm.issue('pf')
        a.e(f"s_mov_b32 s13, {CNT}")
        a.e(f"buffer_load_dword v156, v62, s[{SWS}:{SWS+3}], s13 offen"); vm.issue('pf')
    a.e("v_lshrrev_b32 v37, 1, v3")
    a.e("v_and_b32 v37, 7, v37")
    a.e("v_lshlrev_b32 v38, 7, v3")
    a.e("s_and_b32 s66, s60, 1")
    a.e("s_lshl_b32 s68, s66, 12")
    a.e(f"s_add_u32 s68, s68, {XB}")
    a.e("v_add_u32 v38, s68, v38")
    for t in range(4):
        a.e(f"v_add_u32 v39, {2*t}, v4")
        a.e("v_xor_b32 v39, v39, v37")
        a.e("v_lshlrev_b32 v39, 4, v39")
        a.e(f"v_add_u32 v{40+t}, v38, v39")
        a.e(f"v_xor_b32 v{44+t}, 0x1000, v{40+t}")
    a.e("v_lshrrev_b32 v48, 1, v32")
    a.e("v_lshlrev_b32 v48, 3, v48")
    a.e("v_and_b32 v49, 15, v1")
    a.e("v_lshrrev_b32 v50, 2, v49")
    a.e("v_add_u32 v48, v48, v50")
    a.e("v_lshlrev_b32 v48, 7, v48")
    a.e("v_and_b32 v51, 3, v49")
    a.e("v_lshlrev_b32 v51, 3, v51")
    a.e("v_add_u32 v48, v48, v51")
    a.e("v_and_b32 v51, 1, v32")
    a.e("v_xor_b32 v52, s60, v50")
    a.e("v_lshlrev_b32 v52, 5, v52")
    a.e("v_lshlrev_b32 v53, 12, v51")
    a.e("v_add_u32 v52, v52, v53")
    a.e("v_add_u32 v52, v52, v48")
    a.e("s_and_b32 s68, s60, 2")
    a.e("v_add_u32 v53, s68, v51")
    a.e("v_xor_b32 v53, v53, v50")
    a.e("v_lshlrev_b32 v53, 5, v53")
    a.e("v_add_u32 v53, v53, v48")
    a.e("v_add_u32 v53, 0x2000, v53")
    ACC = 64
    for r in range(48): a.e(f"v_mov_b32 v{ACC + r}, 0")
    a.e(f"s_waitcnt vmcnt({vm.wait_for('prep')})")
    for (xr, acc) in ((16, 54), (20, 55)):
        for q in range(4):
            a.e(f"v_lshlrev_b32 v56, 16, v{xr+q}")
            a.e(f"v_and_b32 v57, 0xffff0000, v{xr+q}")
            a.e(f"v_lshlrev_b32 v58, 16, v{24+q}")
            a.e(f"v_and_b32 v59, 0xffff0000, v{24+q}")
            if q == 0: a.e(f"v_mul_f32 v{acc}, v56, v58")
            else: a.e(f"v_fmac_f32 v{acc}, v56, v58")
            a.e(f"v_fmac_f32 v{acc}, v57, v59")
    wave_sum_dpp(a, 54); wave_sum_dpp(a, 55)
    for r in (54, 55):
        a.e(f"v_mul_f32 v{r}, {f32(-1.4426950408889634)}, v{r}")
        a.e(f"v_exp_f32 v{r}, v{r}")
        a.e(f"v_add_f32 v{r}, 1.0, v{r}")
        a.e(f"v_rcp_f32 v{r}, v{r}")
    a.e("v_cmp_eq_u32 vcc, 63, v1")
    a.e("s_and_saveexec_b64 s[12:13], vcc")
    a.e("s_lshl_b32 s72, s64, 2")
    a.e(f"s_add_u32 s72, s72, {GG}")
    a.e("v_mov_b32 v56, 0")
    a.e(f"buffer_store_dwordx2 v[54:55], v56, s[{SWS}:{SWS+3}], s72 offen{sc}"); vm.issue('st')
    a.e("s_mov_b64 exec, s[12:13]")
    FR = 112
    def reads(kk):
        s, k2 = kk >> 1, kk & 1
        q, t = kk >> 2, kk & 3
        f = FR + 16 * (kk & 1)
        a.e(f"ds_read_b128 v[{f}:{f+3}], v{40+t} offset:{(q % 3) * 8192}")
        a.e(f"ds_read_b128 v[{f+4}:{f+7}], v{44+t} offset:{(q % 3) * 8192}")
        o = WB + (s % 4) * 12288 + k2 * 2048
        a.e(f"ds_read_b64_tr_b16 v[{f+8}:{f+9}], v52 offset:{o}")
        a.e(f"ds_read_b64_tr_b16 v[{f+10}:{f+11}], v52 offset:{o + 512}")
        a.e(f"ds_read_b64_tr_b16 v[{f+12}:{f+13}], v53 offset:{o}")
        a.e(f"ds_read_b64_tr_b16 v[{f+14}:{f+15}], v53 offset:{o + 512}")
    def mfmas(kk):
        f = FR + 16 * (kk & 1)
        A = [f"v[{ACC+16*s}:{ACC+16*s+15}]" for s in range(3)]
        a.e(f"v_mfma_f32_32x32x16_bf16 {A[0]}, v[{f+8}:{f+11}], v[{f}:{f+3}], {A[0]}")
        a.e(f"v_mfma_f32_32x32x16_bf16 {A[1]}, v[{f+8}:{f+11}], v[{f+4}:{f+7}], {A[1]}")
        a.e(f"v_mfma_f32_32x32x16_bf16 {A[2]}, v[{f}:{f+3}], v[{f+12}:{f+15}], {A[2]}")
    PF = []
    if prefetch:
        a.e(f"s_lshl_b32 s14, s{idreg}, 2")
        a.e("s_add_u32 s14, s14, s60")
        a.e("s_lshl_b32 s14, s14, 10")
        a.e("s_add_u32 s15, s14, 0x100000")
        for i, (ptr, nb) in enumerate(((P_WG, 512 * 2752), (P_WU, 512 * 2752), (P_WD, 1376 * 1024), (P_WO, 512 * 1024))):
            PF.append((ptr, nb, 14))
            if nb > 0x100000: PF.append((ptr, nb, 15))
    def prefetch_one(i):
        ptr, nb, so = PF[i]
        srd(a, 8, ptr, nb)
        a.e(f"buffer_load_dwordx4 v[152:155], v7, s[8:11], s{so} offen"); vm.issue('pf')
    if st: st.stamp()
    for s in range(16):
        tags = [f'W{s}'] + ([f'X{s >> 1}'] if s % 2 == 0 else [])
        a.e(f"s_waitcnt vmcnt({vm.wait_for(*tags)}) lgkmcnt(0)")
        a.e("s_barrier")
        if s in (0, 8) and st: st.stamp()
        reads(2 * s)
        if s > 0: mfmas(2 * s - 1)
        if s >= 1 and s + 3 < 16: issue_W(s + 3)
        if s >= 2 and s % 2 == 0 and (s - 2) // 2 + 3 < 8: issue_X((s - 2) // 2 + 3)
        if s == 13:
            for i in range(len(PF)): prefetch_one(i)
        if hook: hook(s, vm)
        a.e("s_waitcnt lgkmcnt(0)")
        reads(2 * s + 1)
        mfmas(2 * s)
    a.e("s_waitcnt lgkmcnt(0)")
    mfmas(31)
    if st: st.stamp()
    a.e("s_lshl_b32 s63, s62, 2")
    a.e("s_add_u32 s63, s63, s60")
    a.e("s_lshl_b32 s64, s61, 1")
    a.e("s_add_u32 s65, s64, s66")
    a.e("s_xor_b32 s66, s65, 1")
    a.e(f"s_mov_b32 s72, {f32(C_SCALE)}")
    a.e("s_lshl_b32 s73, s63, 6")
    for i, stt in enumerate((65, 66)):
        A = ACC + 16 * i; T = FR + 16 * i
        for r in range(8): a.e(f"v_mul_f32 v{A+r}, s72, v{A+r}")
        for p in range(4): a.e(f"v_cvt_pk_bf16_f32 v{T+p}, v{A+2*p}, v{A+2*p+1}")
        for p in range(4): a.e(f"v_cvt_pk_bf16_f32 v{T+4+p}, v{A+8+2*p}, v{A+8+2*p+1}")
        a.e(f"s_add_u32 s74, s73, s{stt}")
        a.e("s_lshl_b32 s75, s74, 10")
        a.e(f"s_add_u32 s75, s75, {QF}")
        a.e(f"buffer_store_dwordx4 v[{T}:{T+3}], v7, s[{SWS}:{SWS+3}], s75 offen{sc}")
        a.e("s_lshl_b32 s75, s74, 11")
        a.e(f"s_add_u32 s75, s75, {KVF}")
        a.e(f"buffer_store_dwordx4 v[{T+4}:{T+7}], v7, s[{SWS}:{SWS+3}], s75 offen{sc}")
        n = 54 + i
        a.e(f"v_mul_f32 v{n}, v{A+8}, v{A+8}")
        for r in range(1, 8): a.e(f"v_fmac_f32 v{n}, v{A+8+r}, v{A+8+r}")
        a.e(f"v_mov_b32 v56, v{n}")
        a.e(f"v_permlane32_swap_b32 v{n}, v56")
        a.e(f"v_add_f32 v{n}, v{n}, v56")
        wave_max_dpp(a, n)
        a.e("v_cmp_eq_u32 vcc, 31, v1")
        a.e("s_and_saveexec_b64 s[12:13], vcc")
        a.e("s_lshl_b32 s75, s74, 2")
        a.e(f"s_add_u32 s75, s75, {KMAX}")
        a.e("v_mov_b32 v56, 0")
        a.e(f"buffer_store_dword v{n}, v56, s[{SWS}:{SWS+3}], s75 offen{sc}")
        a.e("s_mov_b64 exec, s[12:13]")
    VA = ACC + 32; T = FR + 8
    for p in range(8): a.e(f"v_cvt_pk_bf16_f32 v{T+p}, v{VA+2*p}, v{VA+2*p+1}") if False else None
    T = 96 + 16
    T = 144
    for p in range(8): a.e(f"v_cvt_pk_bf16_f32 v{T+p}, v{VA+2*p}, v{VA+2*p+1}")
    a.e("v_lshrrev_b32 v56, 4, v1")
    a.e("v_and_b32 v56, 1, v56")
    a.e("v_lshlrev_b32 v56, 17, v56")
    a.e("v_lshlrev_b32 v57, 8, v4")
    a.e("v_add_u32 v56, v56, v57")
    a.e("v_and_b32 v57, 15, v1")
    a.e("v_lshlrev_b32 v57, 4, v57")
    a.e("v_add_u32 v56, v56, v57")
    a.e("s_lshl_b32 s74, s62, 2")
    a.e("s_and_b32 s75, s60, 2")
    a.e("s_add_u32 s74, s74, s75")
    a.e("s_lshl_b32 s74, s74, 6")
    a.e("s_add_u32 s74, s74, s65")
    a.e("s_lshl_b32 s74, s74, 11")
    a.e(f"s_add_u32 s74, s74, {KVF}")
    a.e(f"buffer_store_dwordx4 v[{T}:{T+3}], v56, s[{SWS}:{SWS+3}], s74 offen offset:1024{sc}")
    a.e(f"buffer_store_dwordx4 v[{T+4}:{T+7}], v56, s[{SWS}:{SWS+3}], s74 offen offset:1536{sc}")

def gen_k1b(a, label):
    kernel_head(a, label)
    a.e("s_cmp_ge_u32 s2, 0x100")
    a.e(f"s_cbranch_scc1 {label}_end")
    st = Stamper(a); st.real(76); st.stamp()
    load_ptrs(a)
    a.e("s_waitcnt lgkmcnt(0)")
    gen_qkv(a, label, 2, st)
    a.e("s_cmp_lg_u32 s2, 0")
    a.e(f"s_cbranch_scc1 {label}_nocnt")
    a.e("s_cmp_lg_u32 s60, 0")
    a.e(f"s_cbranch_scc1 {label}_nocnt")
    a.m(f"""
    v_mov_b32 v48, 0
    v_mov_b32 v49, 0
    v_mov_b32 v50, 0
    v_mov_b32 v51, 0
    s_mov_b32 s72, {CNT}
    buffer_store_dwordx4 v[48:51], v7, s[48:51], s72 offen
    buffer_store_dwordx4 v[48:51], v7, s[48:51], s72 offen offset:1024
    buffer_store_dwordx4 v[48:51], v7, s[48:51], s72 offen offset:2048
    buffer_store_dwordx4 v[48:51], v7, s[48:51], s72 offen offset:3072
    """)
    a.label(f"{label}_nocnt")
    if STAMPS:
        a.e("s_waitcnt vmcnt(0)")
        st.stamp(); st.real(94); st.dump(48, 2, 60, 0, vtmp=20, name=label)
    a.label(f"{label}_end")
    a.e("s_endpgm")
    return kernel_desc(label, 160)
```

```python
from common import *
import k2b, k2g, os

SPIN_MAX = 1 << 16

def signal(a, L, cnt_off_sgpr, SWS=48, gate=None):
    a.e("s_waitcnt vmcnt(0)")
    a.e("s_barrier")
    a.e("s_cmp_lg_u32 s60, 0")
    a.e(f"s_cbranch_scc1 {L}_nosig")
    if gate:
        vf, sd = gate
        a.e("s_mov_b32 s58, 0")
        a.label(f"{L}_gate")
        a.e(f"v_readfirstlane_b32 s57, v{vf}")
        a.e("s_cmp_lg_u32 s57, 0")
        a.e(f"s_cbranch_scc1 {L}_gateok")
        a.e("v_mov_b32 v6, 0")
        a.e(f"buffer_load_dword v{vf}, v6, s[{sd}:{sd+3}], 0 offen sc0 sc1")
        a.e("s_waitcnt vmcnt(0)")
        a.e("s_add_u32 s58, s58, 1")
        a.e(f"s_cmp_lt_u32 s58, {SPIN_MAX}")
        a.e(f"s_cbranch_scc1 {L}_gate")
        a.label(f"{L}_gateok")
        a.flush_hist()
    a.e("v_mov_b32 v6, 0")
    a.e("v_mov_b32 v7, 1")
    a.e("s_mov_b64 exec, 1")
    a.e(f"buffer_atomic_add v7, v6, s[{SWS}:{SWS+3}], s{cnt_off_sgpr} offen sc1")
    a.e("s_mov_b64 exec, -1")
    a.label(f"{L}_nosig")
    a.flush_hist()

def wait_cnt(a, L, cnt_off_sgpr, target, SWS=48, two=False):
    a.e("s_cmp_lg_u32 s60, 0")
    a.e(f"s_cbranch_scc1 {L}_wdone")
    a.e("v_mov_b32 v6, 0")
    a.e("s_mov_b32 s58, 0")
    a.label(f"{L}_poll")
    a.e(f"buffer_load_dword v7, v6, s[{SWS}:{SWS+3}], s{cnt_off_sgpr} offen sc0 sc1")
    if two: a.e(f"buffer_load_dword v9, v6, s[{SWS}:{SWS+3}], s{cnt_off_sgpr} offen offset:{two} sc0 sc1")
    a.e("s_waitcnt vmcnt(0)")
    if two: a.e("v_min_u32 v7, v7, v9")
    a.e("v_readfirstlane_b32 s57, v7")
    a.e(f"s_cmp_ge_u32 s57, {target}")
    a.e(f"s_cbranch_scc1 {L}_wdone")
    a.e("s_add_u32 s58, s58, 1")
    a.e(f"s_cmp_lt_u32 s58, {SPIN_MAX}")
    a.e(f"s_cbranch_scc1 {L}_poll")
    a.label(f"{L}_wdone")
    a.flush_hist()
    a.e("s_barrier")

def gen_k2(a, label):
    kernel_head(a, label)
    a.e("s_cmp_ge_u32 s2, 0x200")
    a.e(f"s_cbranch_scc1 {label}_end")
    load_ptrs(a)
    st = Stamper(a); st.real(76); st.stamp()
    a.e("s_cmp_ge_u32 s2, 0x100")
    a.e(f"s_cbranch_scc1 {label}_G")
    a.e("s_waitcnt lgkmcnt(0)")
    k2b.gen_attn2(a, label + "_A", 2, st, prio=int(os.environ.get('APRIO', '2')))
    if STAMPS:
        a.e("s_waitcnt vmcnt(0)")
        st.stamp(); st.real(94); st.dump(48, 2, 60, 1, vtmp=20, name=label)
    a.e("s_endpgm")
    a.flush_hist()
    a.label(f"{label}_G")
    st2 = Stamper(a); st2.n = 1
    a.e("s_sub_u32 s56, s2, 0x100")
    if os.environ.get('GPRIO'): a.e(f"s_setprio {os.environ['GPRIO']}")
    a.e("s_waitcnt lgkmcnt(0)")
    k2g.gen_up(a, label + "_U", 56, st2, sc=" sc0 sc1")
    a.e("s_lshl_b32 s59, s61, 6")
    a.e(f"s_add_u32 s59, s59, {CNT}")
    signal(a, label + "_S", 59)
    st2.stamp()
    a.e("s_and_b32 s61, s56, 7")
    a.e("s_lshl_b32 s61, s61, 2")
    a.e("s_lshr_b32 s62, s56, 3")
    a.e("s_and_b32 s62, s62, 3")
    a.e("s_add_u32 s61, s61, s62")
    a.e("s_lshr_b32 s61, s61, 1")
    a.e("s_lshl_b32 s59, s61, 6")
    a.e(f"s_add_u32 s59, s59, {CNT}")
    wait_cnt(a, label + "_W", 59, 16)
    st2.stamp()
    k2g.gen_splitk(a, label + "_D", 'down', 56, None, sc_ld=" sc0 sc1")
    if STAMPS:
        a.e("s_waitcnt vmcnt(0)")
        st2.stamp(); st2.real(94); st2.dump(48, 2, 60, 1, vtmp=14, name=label + "_g")
    a.label(f"{label}_end")
    a.e("s_endpgm")
    return kernel_desc(label, 176)

CU, CA, CB = CNT, CNT + 2048, CNT + 3072

def gen_k2f(a, label):
    import k2g
    kernel_head(a, label)
    a.e("s_cmp_ge_u32 s2, 0x200")
    a.e(f"s_cbranch_scc1 {label}_end")
    load_ptrs(a)
    st = Stamper(a); st.real(76); st.stamp()
    a.e("s_cmp_ge_u32 s2, 0x100")
    a.e(f"s_cbranch_scc1 {label}_G")
    a.e("s_waitcnt lgkmcnt(0)")
    k2b.gen_attn2(a, label + "_A", 2, st, prio=int(os.environ.get('APRIO', '1')), sc=" sc0 sc1", mid=False)
    a.e("s_lshl_b32 s59, s62, 7")
    a.e(f"s_add_u32 s59, s59, {CA}")
    signal(a, label + "_SA", 59)
    if st: st.stamp()
    a.e("s_mov_b32 s54, s61")
    a.e("s_mov_b32 s55, s62")
    k2g.lane_setup(a)
    def tile():
        a.e("s_lshl_b32 s61, s55, 2")
        a.e("s_lshr_b32 s62, s54, 3")
        a.e("s_add_u32 s61, s61, s62")
        a.e("s_and_b32 s62, s54, 7")
    def waitf():
        wait_cnt(a, label + "_WA", 59, 32, two=CB - CA)
        if st: st.stamp()
    k2g.gen_splitk(a, label + "_O", 'wo', 2, None, sc_ld=" sc0 sc1", wait_fn=waitf, tile_fn=tile)
    if STAMPS:
        a.e("s_waitcnt vmcnt(0)")
        st.stamp(); st.real(94); st.dump(48, 2, 60, 1, vtmp=14, name=label)
    a.e("s_endpgm")
    a.flush_hist()
    a.label(f"{label}_G")
    st2 = Stamper(a); st2.n = 1
    a.e("s_sub_u32 s56, s2, 0x100")
    a.e("s_waitcnt lgkmcnt(0)")
    k2g.gen_up(a, label + "_U", 56, st2, sc=" sc0 sc1")
    a.e("s_lshl_b32 s59, s61, 7")
    a.e(f"s_add_u32 s59, s59, {CU}")
    signal(a, label + "_S", 59)
    st2.stamp()
    a.e("s_and_b32 s61, s56, 7")
    a.e("s_lshl_b32 s61, s61, 2")
    a.e("s_lshr_b32 s62, s56, 3")
    a.e("s_and_b32 s62, s62, 3")
    a.e("s_add_u32 s61, s61, s62")
    a.e("s_lshr_b32 s55, s61, 2")
    a.e("s_lshr_b32 s61, s61, 1")
    a.e("s_lshl_b32 s59, s61, 7")
    a.e(f"s_add_u32 s59, s59, {CU}")
    def waitg():
        wait_cnt(a, label + "_W", 59, 16)
        st2.stamp()
    k2g.gen_splitk(a, label + "_D", 'down', 56, None, sc_ld=" sc0 sc1", sc_st=" sc0 sc1", wait_fn=waitg)
    a.e("s_lshl_b32 s59, s55, 7")
    a.e(f"s_add_u32 s59, s59, {CB}")
    signal(a, label + "_SB", 59)
    if STAMPS:
        st2.stamp(); st2.stamp(); st2.real(94); st2.dump(48, 2, 60, 1, vtmp=14, name=label + "_g")
    a.label(f"{label}_end")
    a.e("s_endpgm")
    return kernel_desc(label, 176)

CQ = CNT + 4096
def gen_fused(a, label):
    import k2g, k1b
    SCL = os.environ.get('SCL', ' sc0 sc1')
    kernel_head(a, label)
    a.e("s_cmp_ge_u32 s2, 0x200")
    a.e(f"s_cbranch_scc1 {label}_end")
    load_ptrs(a)
    a.e("s_load_dwordx2 s[36:37], s[0:1], 72")
    st = Stamper(a); st.real(76); st.stamp()
    SD = 96
    a.e("s_cmp_ge_u32 s2, 0x100")
    a.e(f"s_cbranch_scc1 {label}_G")
    a.e("s_waitcnt lgkmcnt(0)")
    a.e("s_setprio 2")
    srd(a, SD, 36, 256)
    def flag_load(vf):
        def h(s, vm):
            if s == 14:
                a.e(f"v_mov_b32 v{vf}, 0")
                a.e(f"buffer_load_dword v{vf}, v{vf}, s[{SD}:{SD+3}], 0 offen sc0 sc1"); vm.issue('pf')
        return h
    k1b.gen_qkv(a, label + "_Q", 2, None, sc=" sc0 sc1", prefetch=False, hook=flag_load(156))
    a.e("s_lshl_b32 s59, s62, 7")
    a.e(f"s_add_u32 s59, s59, {CQ}")
    signal(a, label + "_SQ", 59, gate=(156, SD))
    st.stamp()
    a.e("s_and_b32 s59, s2, 7")
    a.e("s_lshl_b32 s59, s59, 7")
    a.e(f"s_add_u32 s59, s59, {CQ}")
    wait_cnt(a, label + "_WQ", 59, 32)
    st.stamp()
    k2b.gen_attn2(a, label + "_A", 2, None, prio=int(os.environ.get('APRIO', '1')), sc=" sc0 sc1", mid=False, scl=SCL)
    st.stamp()
    a.e("s_lshl_b32 s59, s62, 7")
    a.e(f"s_add_u32 s59, s59, {CA}")
    signal(a, label + "_SA", 59)
    st.stamp()
    a.e("s_mov_b32 s54, s61")
    a.e("s_mov_b32 s55, s62")
    k2g.lane_setup(a)
    def tile():
        a.e("s_lshl_b32 s61, s55, 2")
        a.e("s_lshr_b32 s62, s54, 3")
        a.e("s_add_u32 s61, s61, s62")
        a.e("s_and_b32 s62, s54, 7")
    def waitf():
        wait_cnt(a, label + "_WA", 59, 32, two=CB - CA)
        st.stamp()
    k2g.gen_splitk(a, label + "_O", 'wo', 2, None, sc_ld=" sc0 sc1", wait_fn=waitf, tile_fn=tile)
    if STAMPS:
        a.e("s_waitcnt vmcnt(0)")
        st.stamp(); st.real(94); st.dump(48, 2, 60, 0, vtmp=14, name=label)
    a.e("s_endpgm")
    a.flush_hist()
    a.label(f"{label}_G")
    st2 = Stamper(a); st2.n = 1
    a.e("s_sub_u32 s56, s2, 0x100")
    a.e("s_waitcnt lgkmcnt(0)")
    srd(a, SD, 36, 256)
    a.e("s_cmp_lg_u32 s56, 0")
    a.e(f"s_cbranch_scc1 {label}_noinit")
    a.e("v_cmp_gt_u32 vcc, 64, v0")
    a.e("s_cbranch_vccz " + f"{label}_noinit")
    srd(a, 48, P_WS, WS_USED)
    a.e("v_lshlrev_b32 v7, 4, v0")
    for r in range(4): a.e(f"v_mov_b32 v{8 + r}, 0")
    a.e(f"s_mov_b32 s59, {CNT}")
    for i in range(4): a.e(f"buffer_store_dwordx4 v[8:11], v7, s[48:51], s59 offen offset:{1024 * i} sc0 sc1")
    a.e(f"s_mov_b32 s59, {CNT + 4096}")
    a.e(f"buffer_store_dwordx4 v[8:11], v7, s[48:51], s59 offen sc0 sc1")
    a.e("s_waitcnt vmcnt(0)")
    a.e("v_mov_b32 v8, 1")
    a.e("v_mov_b32 v7, 0")
    a.e("s_mov_b64 exec, 1")
    a.e(f"buffer_store_dword v8, v7, s[{SD}:{SD+3}], 0 offen sc0 sc1")
    a.e("s_mov_b64 exec, -1")
    a.label(f"{label}_noinit")
    a.flush_hist()
    def ghook(s, vm):
        if s == 13:
            a.e("s_lshl_b32 s14, s56, 2")
            a.e("s_add_u32 s14, s14, s60")
            a.e("s_lshl_b32 s14, s14, 10")
            a.e("s_add_u32 s15, s14, 0x100000")
            srd(a, 8, P_WD, 1376 * 1024)
            a.e("buffer_load_dwordx4 v[172:175], v5, s[8:11], s14 offen"); vm.issue('pf')
            a.e("buffer_load_dwordx4 v[172:175], v5, s[8:11], s15 offen"); vm.issue('pf')
            srd(a, 8, P_WO, 512 * 1024)
            a.e("buffer_load_dwordx4 v[172:175], v5, s[8:11], s14 offen"); vm.issue('pf')
        if s == 14:
            a.e("v_mov_b32 v13, 0")
            a.e(f"buffer_load_dword v13, v13, s[{SD}:{SD+3}], 0 offen sc0 sc1"); vm.issue('pf')
    k2g.gen_up(a, label + "_U", 56, st2, sc=" sc0 sc1", hook=ghook)
    a.e("s_lshl_b32 s59, s61, 7")
    a.e(f"s_add_u32 s59, s59, {CU}")
    signal(a, label + "_S", 59, gate=(13, SD))
    st2.stamp()
    a.e("s_and_b32 s61, s56, 7")
    a.e("s_lshl_b32 s61, s61, 2")
    a.e("s_lshr_b32 s62, s56, 3")
    a.e("s_and_b32 s62, s62, 3")
    a.e("s_add_u32 s61, s61, s62")
    a.e("s_lshr_b32 s55, s61, 2")
    a.e("s_lshr_b32 s61, s61, 1")
    a.e("s_lshl_b32 s59, s61, 7")
    a.e(f"s_add_u32 s59, s59, {CU}")
    def waitg():
        wait_cnt(a, label + "_W", 59, 16)
        st2.stamp()
    k2g.gen_splitk(a, label + "_D", 'down', 56, None, sc_ld=" sc0 sc1", sc_st=" sc0 sc1", wait_fn=waitg)
    a.e("s_lshl_b32 s59, s55, 7")
    a.e(f"s_add_u32 s59, s59, {CB}")
    signal(a, label + "_SB", 59)
    if STAMPS:
        st2.stamp(); st2.stamp(); st2.real(94); st2.dump(48, 2, 60, 0, vtmp=14, name=label + "_g")
    a.label(f"{label}_end")
    a.e("s_endpgm")
    return kernel_desc(label, 176, sgpr=100)


def g_role(a, label, SD=None, ghook=None, dump_k=1):
    st2 = Stamper(a); st2.n = 1
    k2g.gen_up(a, label + "_U", 56, st2, sc=" sc0 sc1", hook=ghook)
    a.e("s_lshl_b32 s59, s61, 7")
    a.e(f"s_add_u32 s59, s59, {CU}")
    signal(a, label + "_S", 59, gate=(13, SD) if SD else None)
    st2.stamp()
    a.e("s_and_b32 s3, s56, 7")
    a.e("s_lshl_b32 s3, s3, 2")
    a.e("s_lshr_b32 s55, s56, 3")
    a.e("s_and_b32 s55, s55, 3")
    a.e("s_add_u32 s3, s3, s55")
    a.e("s_lshr_b32 s55, s3, 2")
    a.e("s_lshr_b32 s3, s3, 1")
    a.e("s_lshl_b32 s59, s3, 7")
    a.e(f"s_add_u32 s59, s59, {CU}")
    a.e("s_lshl_b32 s3, s55, 7")
    a.e(f"s_add_u32 s3, s3, {CA}")
    def wu():
        wait_cnt(a, label + "_W", 59, 16)
        st2.stamp()
    def wa():
        wait_cnt(a, label + "_WA", 3, 32)
        st2.stamp()
    k2g.gen_dw(a, label + "_D", 56, wu, wa, st=None if not STAMPS else None)
    if STAMPS:
        a.e("s_waitcnt vmcnt(0)")
        st2.stamp(); st2.real(94); st2.dump(48, 2, 60, dump_k, vtmp=14, name=label + "_g")

def gen_k2h(a, label):
    kernel_head(a, label)
    a.e("s_cmp_ge_u32 s2, 0x200")
    a.e(f"s_cbranch_scc1 {label}_end")
    load_ptrs(a)
    st = Stamper(a); st.real(76); st.stamp()
    a.e("s_cmp_ge_u32 s2, 0x100")
    a.e(f"s_cbranch_scc1 {label}_G")
    a.e("s_waitcnt lgkmcnt(0)")
    k2b.gen_attn2(a, label + "_A", 2, st, prio=int(os.environ.get('APRIO', '1')), sc=" sc0 sc1", mid=False)
    a.e("s_lshl_b32 s59, s62, 7")
    a.e(f"s_add_u32 s59, s59, {CA}")
    signal(a, label + "_SA", 59)
    if STAMPS:
        st.stamp(); st.stamp(); st.real(94); st.dump(48, 2, 60, 1, vtmp=14, name=label)
    a.e("s_endpgm")
    a.flush_hist()
    a.label(f"{label}_G")
    a.e("s_sub_u32 s56, s2, 0x100")
    a.e("s_waitcnt lgkmcnt(0)")
    g_role(a, label)
    a.label(f"{label}_end")
    a.e("s_endpgm")
    return kernel_desc(label, 176)

def gen_fused2(a, label):
    import k1b
    SCL = os.environ.get('SCL', ' sc0 sc1')
    kernel_head(a, label)
    a.e("s_cmp_ge_u32 s2, 0x200")
    a.e(f"s_cbranch_scc1 {label}_end")
    load_ptrs(a)
    a.e("s_load_dwordx2 s[36:37], s[0:1], 72")
    st = Stamper(a); st.real(76); st.stamp()
    SD = 96
    a.e("s_cmp_ge_u32 s2, 0x100")
    a.e(f"s_cbranch_scc1 {label}_G")
    a.e("s_waitcnt lgkmcnt(0)")
    a.e("s_setprio 2")
    srd(a, SD, 36, 256)
    def flag_load(vf):
        def h(s, vm):
            if s == 14:
                a.e(f"v_mov_b32 v{vf}, 0")
                a.e(f"buffer_load_dword v{vf}, v{vf}, s[{SD}:{SD+3}], 0 offen sc0 sc1"); vm.issue('pf')
        return h
    k1b.gen_qkv(a, label + "_Q", 2, None, sc=" sc0 sc1", prefetch=False, hook=flag_load(156))
    a.e("s_lshl_b32 s59, s62, 7")
    a.e(f"s_add_u32 s59, s59, {CQ}")
    signal(a, label + "_SQ", 59, gate=(156, SD))
    st.stamp()
    a.e("s_and_b32 s59, s2, 7")
    a.e("s_lshl_b32 s59, s59, 7")
    a.e(f"s_add_u32 s59, s59, {CQ}")
    wait_cnt(a, label + "_WQ", 59, 32)
    st.stamp()
    k2b.gen_attn2(a, label + "_A", 2, None, prio=int(os.environ.get('APRIO', '1')), sc=" sc0 sc1", mid=False, scl=SCL)
    st.stamp()
    a.e("s_lshl_b32 s59, s62, 7")
    a.e(f"s_add_u32 s59, s59, {CA}")
    signal(a, label + "_SA", 59)
    if STAMPS:
        st.stamp(); st.stamp(); st.real(94); st.dump(48, 2, 60, 0, vtmp=14, name=label)
    a.e("s_endpgm")
    a.flush_hist()
    a.label(f"{label}_G")
    a.e("s_sub_u32 s56, s2, 0x100")
    a.e("s_waitcnt lgkmcnt(0)")
    srd(a, SD, 36, 256)
    a.e("s_cmp_lg_u32 s56, 0")
    a.e(f"s_cbranch_scc1 {label}_noinit")
    a.e("v_cmp_gt_u32 vcc, 64, v0")
    a.e("s_cbranch_vccz " + f"{label}_noinit")
    srd(a, 48, P_WS, WS_USED)
    a.e("v_lshlrev_b32 v7, 4, v0")
    for r in range(4): a.e(f"v_mov_b32 v{8 + r}, 0")
    a.e(f"s_mov_b32 s59, {CNT}")
    for i in range(4): a.e(f"buffer_store_dwordx4 v[8:11], v7, s[48:51], s59 offen offset:{1024 * i} sc0 sc1")
    a.e(f"s_mov_b32 s59, {CNT + 4096}")
    a.e(f"buffer_store_dwordx4 v[8:11], v7, s[48:51], s59 offen sc0 sc1")
    a.e("s_waitcnt vmcnt(0)")
    a.e("v_mov_b32 v8, 1")
    a.e("v_mov_b32 v7, 0")
    a.e("s_mov_b64 exec, 1")
    a.e(f"buffer_store_dword v8, v7, s[{SD}:{SD+3}], 0 offen sc0 sc1")
    a.e("s_mov_b64 exec, -1")
    a.label(f"{label}_noinit")
    a.flush_hist()
    GD = int(os.environ.get('GDELAY', '0'))
    def ghook(s, vm):
        if s == 0 and GD:
            nm = f"{label}_gd{len(a.out)}"
            a.e("s_cmp_lg_u32 s60, 0")
            a.e(f"s_cbranch_scc1 {nm}_done")
            a.e("s_and_b32 s57, s56, 7")
            a.e("s_lshl_b32 s57, s57, 7")
            a.e(f"s_add_u32 s14, s57, {CQ}")
            a.e("v_mov_b32 v172, 0")
            a.e("s_mov_b32 s58, 0")
            a.label(f"{nm}_poll")
            a.e(f"buffer_load_dword v173, v172, s[{SD}:{SD+3}], 0 offen sc0 sc1")
            a.e("buffer_load_dword v174, v172, s[48:51], s14 offen sc0 sc1")
            a.e("s_waitcnt vmcnt(0)")
            a.e("v_readfirstlane_b32 s57, v173")
            a.e("v_readfirstlane_b32 s15, v174")
            a.e("s_cmp_lg_u32 s57, 0")
            a.e("s_cselect_b32 s15, s15, 0")
            a.e(f"s_cmp_ge_u32 s15, {GD}")
            a.e(f"s_cbranch_scc1 {nm}_done")
            a.e("s_add_u32 s58, s58, 1")
            a.e(f"s_cmp_lt_u32 s58, {SPIN_MAX}")
            a.e(f"s_cbranch_scc1 {nm}_poll")
            a.label(f"{nm}_done")
            a.flush_hist()
            a.e("s_barrier")
        if s == (1 if GD else 0) and os.environ.get('GPF', '1') == '1':
            a.e("s_lshl_b32 s14, s56, 2")
            a.e("s_add_u32 s14, s14, s60")
            a.e("s_lshl_b32 s14, s14, 10")
            a.e("s_add_u32 s15, s14, 0x100000")
            for ptr in (P_WG, P_WU):
                srd(a, 8, ptr, 512 * 2752)
                a.e("buffer_load_dwordx4 v[172:175], v5, s[8:11], s14 offen"); vm.issue('pf')
                a.e("buffer_load_dwordx4 v[172:175], v5, s[8:11], s15 offen"); vm.issue('pf')
        if s == 13:
            a.e("s_lshl_b32 s14, s56, 2")
            a.e("s_add_u32 s14, s14, s60")
            a.e("s_lshl_b32 s14, s14, 10")
            a.e("s_add_u32 s15, s14, 0x100000")
            srd(a, 8, P_WD, 1376 * 1024)
            a.e("buffer_load_dwordx4 v[172:175], v5, s[8:11], s14 offen"); vm.issue('pf')
            a.e("buffer_load_dwordx4 v[172:175], v5, s[8:11], s15 offen"); vm.issue('pf')
            srd(a, 8, P_WO, 512 * 1024)
            a.e("buffer_load_dwordx4 v[172:175], v5, s[8:11], s14 offen"); vm.issue('pf')
        if s == 14:
            a.e("v_mov_b32 v13, 0")
            a.e(f"buffer_load_dword v13, v13, s[{SD}:{SD+3}], 0 offen sc0 sc1"); vm.issue('pf')
    g_role(a, label, SD=SD, ghook=ghook, dump_k=0)
    a.label(f"{label}_end")
    a.e("s_endpgm")
    return kernel_desc(label, 176, sgpr=100)
```

```python
from common import *
import os, k2g, k2m
from k2g import setprio, NLOG2E
from k2m import signal, wait_cnt, CU, CA

def gen_attn1(a, L, idreg=2, st=None, prio=None, sc='', scl=''):
    vm = VM()
    SWS = 48
    QP = os.environ.get('QPRIO', '')
    if prio is not None: a.e("s_setprio 3")
    a.e("v_and_b32 v1, 63, v0")
    a.e("v_lshrrev_b32 v2, 6, v0")
    a.e("v_readfirstlane_b32 s60, v2")
    a.e("v_lshlrev_b32 v5, 4, v1")
    a.e(f"s_and_b32 s3, s{idreg}, 7")
    a.e("s_lshl_b32 s3, s3, 2")
    a.e(f"s_lshr_b32 s4, s{idreg}, 3")
    a.e("s_and_b32 s4, s4, 3")
    a.e("s_add_u32 s61, s3, s4")
    a.e(f"s_lshr_b32 s62, s{idreg}, 5")
    srd(a, SWS, P_WS, WS_USED)
    a.e("s_lshl_b32 s64, s61, 6")
    a.e("s_lshl_b32 s65, s60, 1")
    a.e("s_add_u32 s66, s64, s65")
    a.e("s_lshl_b32 s66, s66, 11")
    a.e(f"s_add_u32 s66, s66, {KVF}")
    a.e("s_lshl_b32 s67, s60, 12")
    NS, CH = 3, 8
    NCH = 64 // CH
    def issue_chunk(c):
        for i in range(4):
            a.e(f"s_add_u32 m0, s67, {(c % NS) * 16384 + i * 1024}")
            a.e(f"s_add_u32 s68, s66, {c * 16384 + i * 1024}")
            a.e(f"buffer_load_dwordx4 v5, s[{SWS}:{SWS+3}], s68 offen{scl} lds"); vm.issue(f'c{c}')
    issue_chunk(0)
    a.e("v_and_b32 v3, 31, v1")
    a.e("v_lshrrev_b32 v4, 5, v1")
    a.e("s_lshl_b32 s63, s62, 2")
    a.e("s_add_u32 s63, s63, s60")
    Q, C, S, O, P, KB, VB = 8, 16, [32, 48], 64, 80, [88, 92], [96, 104]
    T0, T1, T2, T3 = 112, 113, 114, 115
    a.e("s_add_u32 s65, s64, s63")
    a.e("s_lshl_b32 s65, s65, 10")
    a.e(f"s_add_u32 s65, s65, {QF}")
    a.e(f"buffer_load_dwordx4 v[{Q}:{Q+3}], v5, s[{SWS}:{SWS+3}], s65 offen{scl}"); vm.issue('q')
    a.e("v_lshlrev_b32 v6, 2, v1")
    a.e("s_lshl_b32 s65, s64, 2")
    a.e(f"s_add_u32 s65, s65, {KMAX}")
    a.e(f"buffer_load_dword v{T0}, v6, s[{SWS}:{SWS+3}], s65 offen{scl}"); vm.issue('q')
    a.e("v_lshlrev_b32 v6, 2, v3")
    a.e("s_lshl_b32 s65, s63, 7")
    a.e(f"s_add_u32 s65, s65, {GG}")
    a.e(f"buffer_load_dword v{T1}, v6, s[{SWS}:{SWS+3}], s65 offen{scl}"); vm.issue('q')
    issue_chunk(1)
    a.e("v_lshlrev_b32 v6, 8, v4")
    a.e("v_and_b32 v7, 15, v1")
    a.e("v_lshlrev_b32 v7, 4, v7")
    a.e("v_add_u32 v6, v6, v7")
    a.e(f"v_and_b32 v{T2}, 27, v1")
    a.e(f"v_cmp_eq_u32 vcc, 16, v{T2}")
    a.e(f"v_mov_b32 v{T2}, 0x3f803f80")
    a.e(f"v_cndmask_b32 v{T2}, 0, v{T2}, vcc")
    for r in range(16): a.e(f"v_mov_b32 v{VB[0] + r}, v{T2}")
    for r in range(16): a.e(f"v_mov_b32 v{O+r}, 0")
    a.e("s_mov_b32 s70, 0xffff")
    a.e("s_mov_b32 s71, 0xffff")
    a.e(f"s_waitcnt vmcnt({vm.wait_for('q')})")
    wave_max_dpp(a, T0, half_only=False)
    a.e(f"v_readlane_b32 s69, v{T0}, 63")
    for q in range(4):
        a.e(f"v_lshlrev_b32 v{T2}, 16, v{Q+q}")
        a.e(f"v_and_b32 v{T3}, 0xffff0000, v{Q+q}")
        if q == 0: a.e(f"v_mul_f32 v7, v{T2}, v{T2}")
        else: a.e(f"v_fmac_f32 v7, v{T2}, v{T2}")
        a.e(f"v_fmac_f32 v7, v{T3}, v{T3}")
    a.e(f"v_mov_b32 v{T2}, v7")
    a.e(f"v_permlane32_swap_b32 v7, v{T2}")
    a.e(f"v_add_f32 v7, v7, v{T2}")
    a.e("v_mul_f32 v7, s69, v7")
    a.e("v_sqrt_f32 v7, v7")
    a.e(f"v_mul_f32 v7, {f32(-1.01)}, v7")
    for r in range(16): a.e(f"v_mov_b32 v{C+r}, v7")
    def off(T):
        c, t = T // CH, T % CH
        return (c % NS) * 16384 + t * 2048
    def rdK(T):
        k = KB[T & 1]
        a.e(f"ds_read_b128 v[{k}:{k+3}], v5 offset:{off(T)}")
    def rdV(T):
        v = VB[T & 1]; o = off(T) + 1024
        a.e("s_mov_b64 exec, s[70:71]")
        a.e(f"ds_read_b128 v[{v}:{v+3}], v6 offset:{o}")
        a.e(f"ds_read_b128 v[{v+4}:{v+7}], v6 offset:{o + 512}")
        a.e("s_mov_b64 exec, -1")
    def QK(T):
        k = KB[T & 1]; s = S[T & 1]
        a.e(f"v_mfma_f32_32x32x16_bf16 v[{s}:{s+15}], v[{k}:{k+3}], v[{Q}:{Q+3}], v[{C}:{C+15}]")
    def PV(T, half):
        v = VB[T & 1] + 4 * half; p = P + 4 * half
        a.e(f"v_mfma_f32_32x32x16_bf16 v[{O}:{O+15}], v[{v}:{v+3}], v[{p}:{p+3}], v[{O}:{O+15}]")
    if prio is not None: a.e(f"s_setprio {prio}")
    if st: st.stamp()
    a.e(f"s_waitcnt vmcnt({vm.wait_for('c0')})")
    a.e("s_barrier")
    if st: st.stamp()
    rdK(0); rdK(1); rdV(0)
    a.e("s_waitcnt lgkmcnt(3)")
    QK(0)
    for T in range(64):
        s = S[T & 1]
        def E(i): a.e(f"v_exp_f32 v{s+i}, v{s+i}")
        def Cv(i): a.e(f"v_cvt_pk_bf16_f32 v{P+i}, v{s+2*i}, v{s+2*i+1}")
        a.e("s_waitcnt lgkmcnt(0)")
        if QP and T % 16 == 0: a.e(f"s_setprio {QP[T // 16]}")
        E(0); E(1)
        if T > 0: PV(T - 1, 1)
        E(2); E(3); Cv(0)
        if T + 1 < 64: QK(T + 1)
        E(4); E(5); Cv(1)
        c = T // CH
        bnd = T % CH == CH - 2 and c + 1 < NCH
        if bnd:
            a.e(f"s_waitcnt vmcnt({vm.wait_for(f'c{c+1}')})")
            a.e("s_barrier")
        if T + 2 < 64: rdK(T + 2)
        E(6); E(7); Cv(2)
        if T + 1 < 64: rdV(T + 1)
        if bnd and c + 2 < NCH: issue_chunk(c + 2)
        E(8); E(9); Cv(3); E(10); E(11)
        PV(T, 0)
        Cv(4); E(12); E(13); Cv(5); E(14); E(15); Cv(6); Cv(7)
    PV(63, 1)
    if st: st.stamp()
    if prio is not None: a.e("s_setprio 0")
    a.e("s_nop 7"); a.e("s_nop 7")
    LS = O + 8
    a.e(f"v_mov_b32 v{T2}, {f32(2.0 ** -40)}")
    a.e(f"v_cmp_nge_f32 vcc, v{LS}, v{T2}")
    a.e("s_cmp_eq_u64 vcc, 0")
    a.e(f"s_cbranch_scc1 {L}_ok")
    s = S[0]; k = KB[0]; v = VB[0]; p = P
    a.e("s_lshl_b32 s72, s64, 11")
    a.e(f"s_add_u32 s72, s72, {KVF}")
    a.e(f"v_mov_b32 v{T2}, {f32(-3.0e38)}")
    a.e("s_mov_b32 s73, 0")
    a.label(f"{L}_mx")
    a.e("s_add_u32 s68, s72, s73")
    a.e(f"buffer_load_dwordx4 v[{k}:{k+3}], v5, s[{SWS}:{SWS+3}], s68 offen{scl}")
    a.e("s_waitcnt vmcnt(0)")
    a.e(f"v_mfma_f32_32x32x16_bf16 v[{s}:{s+15}], v[{k}:{k+3}], v[{Q}:{Q+3}], 0")
    for i in range(8): a.e(f"v_max3_f32 v{T2}, v{T2}, v{s+2*i}, v{s+2*i+1}")
    a.e("s_add_u32 s73, s73, 2048")
    a.e("s_cmp_lt_u32 s73, 131072")
    a.e(f"s_cbranch_scc1 {L}_mx")
    a.e(f"v_mov_b32 v{T3}, v{T2}")
    a.e(f"v_permlane32_swap_b32 v{T2}, v{T3}")
    a.e(f"v_max_f32 v{T2}, v{T2}, v{T3}")
    a.e(f"v_sub_f32 v{T2}, 0, v{T2}")
    for r in range(16): a.e(f"v_mov_b32 v{C+r}, v{T2}")
    for r in range(16): a.e(f"v_mov_b32 v{O+r}, 0")
    a.e("s_mov_b32 s73, 0")
    a.label(f"{L}_sl")
    a.e("s_add_u32 s68, s72, s73")
    a.e(f"buffer_load_dwordx4 v[{k}:{k+3}], v5, s[{SWS}:{SWS+3}], s68 offen{scl}")
    a.e("s_mov_b64 exec, s[70:71]")
    a.e(f"buffer_load_dwordx4 v[{v}:{v+3}], v6, s[{SWS}:{SWS+3}], s68 offen offset:1024{scl}")
    a.e(f"buffer_load_dwordx4 v[{v+4}:{v+7}], v6, s[{SWS}:{SWS+3}], s68 offen offset:1536{scl}")
    a.e("s_mov_b64 exec, -1")
    a.e("s_waitcnt vmcnt(0)")
    a.e(f"v_mfma_f32_32x32x16_bf16 v[{s}:{s+15}], v[{k}:{k+3}], v[{Q}:{Q+3}], v[{C}:{C+15}]")
    for i in range(16): a.e(f"v_exp_f32 v{s+i}, v{s+i}")
    for i in range(8): a.e(f"v_cvt_pk_bf16_f32 v{p+i}, v{s+2*i}, v{s+2*i+1}")
    a.e(f"v_mfma_f32_32x32x16_bf16 v[{O}:{O+15}], v[{v}:{v+3}], v[{p}:{p+3}], v[{O}:{O+15}]")
    a.e(f"v_mfma_f32_32x32x16_bf16 v[{O}:{O+15}], v[{v+4}:{v+7}], v[{p+4}:{p+7}], v[{O}:{O+15}]")
    a.e("s_add_u32 s73, s73, 2048")
    a.e("s_cmp_lt_u32 s73, 131072")
    a.e("s_nop 7")
    a.e(f"s_cbranch_scc1 {L}_sl")
    a.e("s_nop 7"); a.e("s_nop 7")
    a.label(f"{L}_ok")
    a.flush_hist()
    a.e(f"v_rcp_f32 v{T2}, v{LS}")
    a.e(f"v_mul_f32 v{T2}, v{T2}, v{T1}")
    for r in range(8): a.e(f"v_mul_f32 v{O+r}, v{O+r}, v{T2}")
    for p_ in range(4): a.e(f"v_cvt_pk_bf16_f32 v{P+p_}, v{O+2*p_}, v{O+2*p_+1}")
    a.e("s_lshl_b32 s65, s63, 5")
    a.e("s_add_u32 s65, s65, s61")
    a.e("s_lshl_b32 s65, s65, 10")
    a.e(f"s_add_u32 s65, s65, {OF}")
    a.e(f"buffer_store_dwordx4 v[{P}:{P+3}], v5, s[{SWS}:{SWS+3}], s65 offen{sc}")


def gen_up3_body(a, L, nt, st=None, sc="", hook=None):
    vm = VM()
    SW, SX, SWS = 40, 44, 48
    RB = nt * 64
    BLK = 16 * RB
    STG = 4 * BLK
    NSTG = 3
    XB = 36864
    lpr = RB // 16
    VL, VW, XA0 = 12, 11, 13
    t0, t1, t2, t3 = 16, 17, 18, 19
    a.e(f"v_mov_b32 v{VL}, v5")
    a.e("s_lshl_b32 s63, s61, 2")
    a.e("s_add_u32 s63, s63, s60")
    a.e(f"v_lshrrev_b32 v{t0}, 3, v1")
    a.e("s_lshl_b32 s68, s63, 5")
    a.e(f"v_add_u32 v{t0}, s68, v{t0}")
    a.e(f"v_lshlrev_b32 v{t0}, 10, v{t0}")
    a.e(f"v_and_b32 v{t1}, 7, v1")
    a.e(f"v_lshrrev_b32 v{t2}, 4, v1")
    a.e(f"v_xor_b32 v{t1}, v{t1}, v{t2}")
    a.e(f"v_xor_b32 v{t3}, 4, v{t1}")
    a.e(f"v_lshlrev_b32 v{t1}, 4, v{t1}")
    a.e(f"v_lshlrev_b32 v{t3}, 4, v{t3}")
    a.e(f"v_add_u32 v14, v{t0}, v{t1}")
    a.e(f"v_add_u32 v15, v{t0}, v{t3}")
    a.e("v_add_u32 v15, 0x2000, v15")
    a.e("s_lshl_b32 s67, s60, 12")
    a.e(f"s_add_u32 s67, s67, {XB}")
    def issue_X(q):
        for b in range(4):
            a.e(f"s_add_u32 m0, s67, {b * 1024}")
            a.e(f"s_mov_b32 s66, {q * 128 + (b >> 1) * 16384}")
            a.e(f"buffer_load_dwordx4 v{14 + (b & 1)}, s[{SX}:{SX+3}], s66 offen lds"); vm.issue(f'X{q}')
    VD = 8
    for i in range(nt):
        a.e(f"v_add_u32 v{t0}, {64 * i}, v1")
        if lpr == 8:
            a.e(f"v_lshrrev_b32 v{t1}, 3, v{t0}")
        else:
            a.e(f"v_mul_u32_u24 v{t1}, 43691, v{t0}")
            a.e(f"v_lshrrev_b32 v{t1}, 19, v{t1}")
        a.e(f"v_mul_u32_u24 v{t2}, {lpr}, v{t1}")
        a.e(f"v_sub_u32 v{t2}, v{t0}, v{t2}")
        a.e(f"v_mul_u32_u24 v{t1}, 2752, v{t1}")
        a.e(f"v_lshlrev_b32 v{t2}, 4, v{t2}")
        a.e(f"v_add_u32 v{VD + i}, v{t1}, v{t2}")
    a.e("s_lshr_b32 s64, s60, 1")
    a.e(f"s_mul_i32 s64, s64, {16 * 2752}")
    a.e("s_lshl_b32 s65, s62, 6")
    a.e("s_add_u32 s64, s64, s65")
    a.e(f"s_mul_i32 s65, s60, {BLK}")
    def issue_W(s):
        for i in range(nt):
            a.e(f"s_add_u32 m0, s65, {(s % NSTG) * STG + i * 1024}")
            a.e(f"s_add_u32 s66, s64, {s * 32 * 2752}")
            a.e(f"buffer_load_dwordx4 v{VD + i}, s[{SW}:{SW+3}], s66 offen lds"); vm.issue(f'W{s}')
    issue_W(0); issue_X(0); issue_W(1)
    a.e(f"v_lshrrev_b32 v{t0}, 4, v1")
    a.e(f"v_lshrrev_b32 v{VW}, 1, v{t0}")
    a.e(f"v_lshlrev_b32 v{VW}, 3, v{VW}")
    a.e(f"v_and_b32 v{t1}, 15, v1")
    a.e(f"v_lshrrev_b32 v{t2}, 2, v{t1}")
    a.e(f"v_add_u32 v{VW}, v{VW}, v{t2}")
    a.e(f"v_mul_u32_u24 v{VW}, {RB}, v{VW}")
    a.e(f"v_and_b32 v{t2}, 1, v{t0}")
    a.e(f"v_lshlrev_b32 v{t2}, 5, v{t2}")
    a.e(f"v_add_u32 v{VW}, v{VW}, v{t2}")
    a.e(f"v_and_b32 v{t2}, 3, v{t1}")
    a.e(f"v_lshlrev_b32 v{t2}, 3, v{t2}")
    a.e(f"v_add_u32 v{VW}, v{VW}, v{t2}")
    a.e(f"v_lshrrev_b32 v{t1}, 1, v3")
    a.e(f"v_and_b32 v{t1}, 7, v{t1}")
    a.e(f"v_xor_b32 v{t1}, v{t1}, v4")
    a.e(f"v_lshlrev_b32 v{t1}, 4, v{t1}")
    a.e(f"v_lshlrev_b32 v{t2}, 7, v3")
    a.e(f"v_add_u32 v{t2}, s67, v{t2}")
    a.e(f"v_add_u32 v{XA0}, v{t2}, v{t1}")
    ACC = 16
    for r in range(32 * nt): a.e(f"v_mov_b32 v{ACC + r}, 0")
    FR = 112
    XF_ = [0, 4, 160, 164]
    def readX(t):
        x = XF_[t]
        if t == 0:
            a.e(f"ds_read_b128 v[{x}:{x+3}], v{XA0}")
        else:
            a.e(f"v_xor_b32 v{x}, {t * 32}, v{XA0}")
            a.e(f"ds_read_b128 v[{x}:{x+3}], v{x}")
    def reads(kk):
        s, k2 = kk >> 1, kk & 1
        f = FR + 24 * (kk & 1)
        for mat in range(2):
            for t in range(nt):
                o = (s % NSTG) * STG + (k2 * 2 + mat) * BLK + t * 64
                g = f + (mat * nt + t) * 4
                a.e(f"ds_read_b64_tr_b16 v[{g}:{g+1}], v{VW} offset:{o}")
                a.e(f"ds_read_b64_tr_b16 v[{g+2}:{g+3}], v{VW} offset:{o + 4 * RB}")
    def mfmas(kk):
        f = FR + 24 * (kk & 1)
        x = XF_[kk & 3]
        for mat in range(2):
            for t in range(nt):
                g = f + (mat * nt + t) * 4
                A = ACC + (mat * nt + t) * 16
                a.e(f"v_mfma_f32_32x32x16_bf16 v[{A}:{A+15}], v[{g}:{g+3}], v[{x}:{x+3}], v[{A}:{A+15}]")
    if st: st.stamp()
    setprio(a, 1)
    for s in range(16):
        even = s % 2 == 0
        tags = [f'W{s}'] + ([f'X{s >> 1}'] if even else [])
        a.e(f"s_waitcnt vmcnt({vm.wait_for(*tags)}) lgkmcnt(0)")
        a.e("s_barrier")
        if even:
            readX(0)
        reads(2 * s)
        if even:
            readX(1); readX(2)
        if s > 0: mfmas(2 * s - 1)
        if even: readX(3)
        if s + 2 < 16: issue_W(s + 2)
        if hook: hook(s, vm)
        a.e("s_waitcnt lgkmcnt(0)")
        if even and (s >> 1) + 1 < 8: issue_X((s >> 1) + 1)
        reads(2 * s + 1)
        mfmas(2 * s)
    a.e("s_waitcnt lgkmcnt(0)")
    mfmas(31)
    if st: st.stamp()
    setprio(a, 2)
    T = FR
    for t in range(nt):
        G = ACC + t * 16; U = ACC + (nt + t) * 16
        for r in range(16): a.e(f"v_mul_f32 v{T + r}, {f32(NLOG2E)}, v{G + r}")
        for r in range(16): a.e(f"v_exp_f32 v{T + r}, v{T + r}")
        for r in range(16): a.e(f"v_mul_f32 v{G + r}, v{G + r}, v{U + r}")
        for r in range(16): a.e(f"v_add_f32 v{T + r}, 1.0, v{T + r}")
        for r in range(16): a.e(f"v_rcp_f32 v{T + r}, v{T + r}")
        for r in range(16): a.e(f"v_mul_f32 v{G + r}, v{G + r}, v{T + r}")
        for p in range(8): a.e(f"v_cvt_pk_bf16_f32 v{U + p}, v{G + 2 * p}, v{G + 2 * p + 1}")
        if t == 0:
            a.e("s_mul_i32 s66, s63, 86")
            a.e("s_lshl_b32 s68, s62, 1")
            a.e("s_add_u32 s66, s66, s68")
            a.e("s_lshl_b32 s66, s66, 10")
            a.e(f"s_add_u32 s66, s66, {HF}")
        else:
            a.e("s_add_u32 s66, s66, 2048")
        a.e(f"buffer_store_dwordx4 v[{U}:{U+3}], v{VL}, s[{SWS}:{SWS+3}], s66 offen{sc}")
        a.e(f"buffer_store_dwordx4 v[{U+4}:{U+7}], v{VL}, s[{SWS}:{SWS+3}], s66 offen offset:1024{sc}")

def gen_up3(a, L, idreg, st=None, sc="", hook=None):
    setprio(a, 0)
    k2g.lane_setup(a)
    a.e(f"s_and_b32 s61, s{idreg}, 7")
    a.e("s_lshl_b32 s61, s61, 1")
    a.e(f"s_lshr_b32 s62, s{idreg}, 3")
    a.e("s_and_b32 s63, s62, 1")
    a.e("s_add_u32 s61, s61, s63")
    a.e(f"s_lshr_b32 s59, s{idreg}, 4")
    a.e("s_bitcmp1_b32 s60, 0")
    a.e(f"s_cselect_b32 s40, s{P_WU}, s{P_WG}")
    a.e(f"s_cselect_b32 s41, s{P_WU+1}, s{P_WG+1}")
    a.e(f"s_mov_b32 s42, {512 * 2752}")
    a.e("s_mov_b32 s43, 0x20000")
    srd(a, 48, P_WS, WS_USED)
    srd(a, 44, P_AX, 2048 * 1024)
    a.e("s_cmp_lt_u32 s59, 11")
    a.e(f"s_cbranch_scc0 {L}_up2")
    a.e("s_mul_i32 s62, s59, 3")
    gen_up3_body(a, L + "_u3", 3, st, sc, hook)
    a.e(f"s_branch {L}_updone")
    a.flush_hist()
    a.label(f"{L}_up2")
    a.e("s_lshl_b32 s62, s59, 1")
    a.e("s_add_u32 s62, s62, 11")
    gen_up3_body(a, L + "_u2", 2, None, sc, hook)
    a.label(f"{L}_updone")
    a.flush_hist()
    a.e("v_mov_b32 v5, v12")
    a.e("v_lshrrev_b32 v1, 4, v12")
    a.e("v_and_b32 v3, 31, v1")
    a.e("v_lshrrev_b32 v4, 5, v1")


def gen_dw3(a, L, idreg, wait_up, wait_att, st=None, sc_ld=" sc0 sc1", sc_out=""):
    vm = VM()
    SW, SW2, SWS, SO = 40, 44, 48, 52
    ND, NW, NRW, NRH = 22, 8, 6, 8
    NT = ND + NW
    a.e(f"s_and_b32 s61, s{idreg}, 7")
    a.e("s_lshl_b32 s61, s61, 2")
    a.e(f"s_lshr_b32 s62, s{idreg}, 3")
    a.e("s_and_b32 s62, s62, 3")
    a.e("s_add_u32 s61, s61, s62")
    a.e(f"s_lshr_b32 s62, s{idreg}, 5")
    srd(a, SWS, P_WS, WS_USED)
    srd(a, SW, P_WD, 1376 * 1024)
    srd(a, SW2, P_WO, 512 * 1024)
    srd(a, SO, P_OUT, 2048 * 1024)
    a.e("s_mul_i32 s63, s60, 22")
    a.e("s_cmp_eq_u32 s60, 3")
    a.e("s_cselect_b32 s64, 1, 0")
    a.e("s_sub_u32 s63, s63, s64")
    a.e("s_and_b32 s71, s60, 1")
    a.e("s_lshl_b32 s73, s61, 1")
    a.e("s_add_u32 s74, s73, s71")
    a.e("s_xor_b32 s75, s74, 1")
    for sb, tt in ((64, 74), (65, 75)):
        a.e(f"s_mul_i32 s{sb}, s{tt}, 86")
        a.e(f"s_add_u32 s{sb}, s{sb}, s63")
        a.e(f"s_lshl_b32 s{sb}, s{sb}, 10")
        a.e(f"s_add_u32 s{sb}, s{sb}, {HF}")
    a.e("s_lshl_b32 s66, s63, 14")
    a.e("s_lshl_b32 s67, s62, 7")
    a.e("s_add_u32 s66, s66, s67")
    a.e("s_lshl_b32 s4, s60, 17")
    a.e("s_add_u32 s4, s4, s67")
    a.e("s_lshl_b32 s68, s60, 3")
    for sb, tt in ((5, 74), (6, 75)):
        a.e(f"s_lshl_b32 s{sb}, s{tt}, 5")
        a.e(f"s_add_u32 s{sb}, s{sb}, s68")
        a.e(f"s_lshl_b32 s{sb}, s{sb}, 10")
        a.e(f"s_add_u32 s{sb}, s{sb}, {OF}")
    for sb, tt in ((7, 74), (8, 75)):
        a.e(f"s_lshl_b32 s{sb}, s{tt}, 7")
        a.e(f"s_add_u32 s{sb}, s{sb}, {GG}")
    a.e(f"s_mul_i32 s67, s60, {NRW * 2048}")
    a.e("v_lshrrev_b32 v6, 3, v1")
    a.e("v_and_b32 v7, 7, v1")
    a.e("v_lshrrev_b32 v8, 1, v6")
    a.e("v_and_b32 v8, 1, v8")
    a.e("v_lshlrev_b32 v8, 2, v8")
    a.e("v_xor_b32 v7, v7, v8")
    a.e("v_lshlrev_b32 v7, 4, v7")
    a.e("v_lshlrev_b32 v6, 10, v6")
    a.e("v_add_u32 v8, v6, v7")
    ACC, HR, WF = 16, 80, 144
    def issueW(kk):
        sl = kk % NRW
        last_opt = kk == ND - 1
        if last_opt:
            a.e("s_cmp_ge_u32 s60, 2")
            a.e(f"s_cselect_b32 s69, {kk - 1}, {kk}")
            a.e("s_lshl_b32 s69, s69, 14")
        for i in range(2):
            a.e(f"s_add_u32 m0, s67, {sl * 2048 + i * 1024}")
            if kk >= ND:
                a.e(f"s_add_u32 s68, s4, {(kk - ND) * 16384 + i * 8192}")
            elif last_opt:
                a.e("s_add_u32 s68, s66, s69")
                if i: a.e("s_add_u32 s68, s68, 8192")
            else:
                a.e(f"s_add_u32 s68, s66, {kk * 16384 + i * 8192}")
            sr = SW2 if kk >= ND else SW
            a.e(f"buffer_load_dwordx4 v8, s[{sr}:{sr+3}], s68 offen lds"); vm.issue(f'w{kk}')
    def issueH(kk):
        sl = kk % NRH
        last_opt = kk == ND - 1
        if last_opt:
            a.e("s_cmp_ge_u32 s60, 2")
            a.e(f"s_cselect_b32 s70, {kk - 1}, {kk}")
            a.e("s_lshl_b32 s70, s70, 10")
        for j in range(2):
            r = HR + sl * 8 + j * 4
            if kk >= ND: a.e(f"s_add_u32 s68, s{5 + j}, {(kk - ND) * 1024}")
            elif last_opt: a.e(f"s_add_u32 s68, s{64 + j}, s70")
            else: a.e(f"s_add_u32 s68, s{64 + j}, {kk * 1024}")
            a.e(f"buffer_load_dwordx4 v[{r}:{r+3}], v5, s[{SWS}:{SWS+3}], s68 offen{sc_ld}"); vm.issue(f'h{kk}')
    for kk in range(NRW): issueW(kk)
    a.e("v_lshrrev_b32 v6, 4, v1")
    a.e("v_and_b32 v7, 15, v1")
    a.e("v_lshrrev_b32 v9, 2, v7")
    a.e("v_and_b32 v10, 3, v7")
    a.e("v_lshrrev_b32 v11, 1, v6")
    a.e("v_lshlrev_b32 v11, 2, v11")
    a.e("v_add_u32 v11, v11, v9")
    a.e("v_lshlrev_b32 v11, 7, v11")
    a.e("v_and_b32 v12, 1, v10")
    a.e("v_lshlrev_b32 v12, 5, v12")
    a.e("v_add_u32 v11, v11, v12")
    a.e("v_and_b32 v12, 1, v6")
    a.e("v_lshlrev_b32 v12, 4, v12")
    a.e("v_add_u32 v11, v11, v12")
    a.e("v_lshrrev_b32 v12, 1, v10")
    a.e("v_lshlrev_b32 v12, 3, v12")
    a.e("v_add_u32 v11, v11, v12")
    a.e("v_lshrrev_b32 v12, 1, v9")
    a.e("v_lshlrev_b32 v12, 6, v12")
    a.e("v_add_u32 v11, v11, v12")
    a.e("v_add_u32 v11, s67, v11")
    a.e("s_lshr_b32 s72, s60, 1")
    a.e("s_lshl_b32 s72, s72, 6")
    a.e("v_xor_b32 v11, s72, v11")
    a.e("v_xor_b32 v12, 64, v11")
    for r in range(64): a.e(f"v_mov_b32 v{ACC + r}, 0")
    wait_up()
    for kk in range(NRH): issueH(kk)
    def reads(kk):
        sl = kk % NRW
        f = WF + 8 * (kk & 1)
        for t in range(2):
            a.e(f"ds_read_b64_tr_b16 v[{f+4*t}:{f+4*t+1}], v{11+t} offset:{sl * 2048}")
            a.e(f"ds_read_b64_tr_b16 v[{f+4*t+2}:{f+4*t+3}], v{11+t} offset:{sl * 2048 + 1024}")
    def mfmas(kk):
        f = WF + 8 * (kk & 1)
        h = HR + (kk % NRH) * 8
        for t in range(2):
            for j in range(2):
                A = ACC + (t * 2 + j) * 16
                a.e(f"v_mfma_f32_32x32x16_bf16 v[{A}:{A+15}], v[{f+4*t}:{f+4*t+3}], v[{h+4*j}:{h+4*j+3}], v[{A}:{A+15}]")
    if st: st.stamp()
    setprio(a, 1)
    a.e(f"s_waitcnt vmcnt({vm.wait_for('w0', 'h0')})")
    reads(0)
    for kk in range(ND):
        tags = [f'w{kk+1}'] + ([f'h{kk+1}'] if kk + 1 < ND else [])
        a.e(f"s_waitcnt vmcnt({vm.wait_for(*tags)})")
        reads(kk + 1)
        a.e("s_waitcnt lgkmcnt(4)")
        opt = kk == ND - 1
        if opt:
            a.e("s_cmp_ge_u32 s60, 2")
            a.e(f"s_cbranch_scc1 {L}_skiplast")
        mfmas(kk)
        if opt:
            a.label(f"{L}_skiplast")
            a.flush_hist()
        if kk + NRW < NT - 2: issueW(kk + NRW)
        if kk + NRH < ND: issueH(kk + NRH)
    a.e(f"s_waitcnt vmcnt({vm.wait_for(f'w{ND+1}')})")
    reads(ND + 1)
    a.e("s_waitcnt lgkmcnt(0)")
    issueW(NT - 2); issueW(NT - 1)
    if st: st.stamp()
    setprio(a, 2)
    wait_att()
    a.e("v_lshlrev_b32 v13, 2, v3")
    a.e(f"buffer_load_dword v9, v13, s[{SWS}:{SWS+3}], s7 offen{sc_ld}"); vm.issue('g')
    a.e(f"buffer_load_dword v10, v13, s[{SWS}:{SWS+3}], s8 offen{sc_ld}"); vm.issue('g')
    for kk in range(ND, NT): issueH(kk)
    a.e(f"s_waitcnt vmcnt({vm.wait_for('g')})")
    a.e("v_sub_f32 v9, 1.0, v9")
    a.e("v_sub_f32 v10, 1.0, v10")
    for t in range(2):
        for j in range(2):
            A = ACC + (t * 2 + j) * 16
            for r in range(16): a.e(f"v_mul_f32 v{A + r}, v{A + r}, v{9 + j}")
    for kk in range(ND, NT):
        tags = [f'h{kk}'] + ([f'w{kk+2}'] if kk + 2 < NT else [])
        a.e(f"s_waitcnt vmcnt({vm.wait_for(*tags)})")
        a.e("s_waitcnt lgkmcnt(4)" if (ND + 1 < kk + 1 < NT) else "s_waitcnt lgkmcnt(0)")
        mfmas(kk)
        if kk + 2 < NT: reads(kk + 2)
    if st: st.stamp()
    a.e("s_nop 7"); a.e("s_nop 7")
    a.e("s_barrier")
    for i in range(1, 4):
        a.e(f"s_xor_b32 s68, s60, {i}")
        a.e("s_mul_i32 s68, s68, 12288")
        a.e(f"s_add_u32 s68, s68, {(i - 1) * 4096}")
        a.e("v_add_u32 v6, s68, v5")
        for q in range(4):
            r = ACC + i * 16 + q * 4
            a.e(f"ds_write_b128 v6, v[{r}:{r+3}] offset:{q * 1024}")
    a.e("s_waitcnt lgkmcnt(0)")
    a.e("s_barrier")
    a.e("v_add_u32 v6, s67, v5")
    for s in range(3):
        for q in range(4):
            r = ACC + 16 + s * 16 + q * 4
            a.e(f"ds_read_b128 v[{r}:{r+3}], v6 offset:{s * 4096 + q * 1024}")
    a.e("s_lshr_b32 s72, s60, 1")
    a.e("s_lshl_b32 s73, s62, 1")
    a.e("s_add_u32 s73, s73, s72")
    a.e("v_lshlrev_b32 v6, 10, v3")
    a.e("v_lshlrev_b32 v7, 5, v4")
    a.e("v_add_u32 v6, v6, v7")
    a.e("s_lshl_b32 s74, s74, 15")
    a.e("s_lshl_b32 s73, s73, 6")
    a.e("s_add_u32 s73, s73, s74")
    a.e("s_waitcnt lgkmcnt(8)")
    for r in range(16): a.e(f"v_add_f32 v{ACC + r}, v{ACC + r}, v{ACC + 16 + r}")
    a.e("s_waitcnt lgkmcnt(0)")
    for r in range(16): a.e(f"v_add_f32 v{ACC + 32 + r}, v{ACC + 32 + r}, v{ACC + 48 + r}")
    for r in range(16): a.e(f"v_add_f32 v{ACC + r}, v{ACC + r}, v{ACC + 32 + r}")
    for p in range(8): a.e(f"v_cvt_pk_bf16_f32 v{ACC + 16 + p}, v{ACC + 2 * p}, v{ACC + 2 * p + 1}")
    a.e(f"buffer_store_dwordx4 v[{ACC+16}:{ACC+19}], v6, s[{SO}:{SO+3}], s73 offen{sc_out}")
    a.e(f"buffer_store_dwordx4 v[{ACC+20}:{ACC+23}], v6, s[{SO}:{SO+3}], s73 offen offset:16{sc_out}")


def g_role3(a, label, dump_k=1):
    st2 = Stamper(a); st2.n = 1
    gen_up3(a, label + "_U", 56, st2, sc=" sc0 sc1")
    a.e("s_lshl_b32 s59, s61, 7")
    a.e(f"s_add_u32 s59, s59, {CU}")
    signal(a, label + "_S", 59)
    st2.stamp()
    a.e("s_and_b32 s3, s56, 7")
    a.e("s_lshl_b32 s3, s3, 2")
    a.e("s_lshr_b32 s55, s56, 3")
    a.e("s_and_b32 s55, s55, 3")
    a.e("s_add_u32 s3, s3, s55")
    a.e("s_lshr_b32 s3, s3, 1")
    a.e("s_lshl_b32 s59, s3, 7")
    a.e(f"s_add_u32 s3, s59, {CA}")
    a.e(f"s_add_u32 s59, s59, {CU}")
    def wu():
        wait_cnt(a, label + "_W", 59, 16)
        st2.stamp()
    def wa():
        wait_cnt(a, label + "_WA", 3, 32)
        st2.stamp()
    gen_dw3(a, label + "_D", 56, wu, wa, sc_out=os.environ.get('SCO', ''))
    if STAMPS:
        a.e("s_waitcnt vmcnt(0)")
        st2.stamp(); st2.real(94); st2.dump(48, 2, 60, dump_k, vtmp=14, name=label + "_g")

def gen_k3(a, label):
    kernel_head(a, label)
    a.e("s_cmp_ge_u32 s2, 0x300")
    a.e(f"s_cbranch_scc1 {label}_end")
    load_ptrs(a)
    st = Stamper(a); st.real(76); st.stamp()
    a.e("s_cmp_ge_u32 s2, 0x200")
    a.e(f"s_cbranch_scc1 {label}_G")
    a.e("s_waitcnt lgkmcnt(0)")
    gen_attn1(a, label + "_A", 2, st, prio=int(os.environ.get('APRIO', '1')), sc=" sc0 sc1")
    a.e("s_lshl_b32 s59, s62, 7")
    a.e(f"s_add_u32 s59, s59, {CA}")
    signal(a, label + "_SA", 59)
    if STAMPS:
        st.stamp(); st.stamp(); st.real(94); st.dump(48, 2, 60, 1, vtmp=14, name=label)
    a.e("s_endpgm")
    a.flush_hist()
    a.label(f"{label}_G")
    a.e("s_sub_u32 s56, s2, 0x200")
    a.e("s_waitcnt lgkmcnt(0)")
    g_role3(a, label)
    a.label(f"{label}_end")
    a.e("s_endpgm")
    return kernel_desc(label, 168)
```

```python
import k1, k1b, k2a, k2g, k2b, k2m, os
def stages(cfg):
    if cfg == 'simple':
        return [("k1_qkv_kernel", 256, 256, 163840, k1.gen_k1),
                ("k2_attn_kernel", 512, 256, 81920, k2a.gen_attn),
                ("k3_up_kernel", 256, 256, 81920, k2g.gen_up_kernel),
                ("k4_down_kernel", 256, 256, 65536, k2g.gen_splitk_kernel('down', 3)),
                ("k5_wo_kernel", 256, 256, 65536, k2g.gen_splitk_kernel('wo', 4))]
    if cfg == 'simple2':
        return [("k1_qkv_kernel", 256, 256, 163840, k1.gen_k1),
                ("k2_attn_kernel", 256, 256, 81920, k2b.gen_attn2_kernel),
                ("k3_up_kernel", 256, 256, 81920, k2g.gen_up_kernel),
                ("k4_down_kernel", 256, 256, 65536, k2g.gen_splitk_kernel('down', 3)),
                ("k5_wo_kernel", 256, 256, 65536, k2g.gen_splitk_kernel('wo', 4))]
    if cfg == 'm3':
        return [("k1_qkv_kernel", 256, 256, 163840, k1.gen_k1),
                ("k2_mix_kernel", 512, 256, 81920, k2m.gen_k2),
                ("k5_wo_kernel", 256, 256, 65536, k2g.gen_splitk_kernel('wo', 2))]
    if cfg == 'm3b':
        return [("k1_qkv_kernel", 256, 256, 81920, k1b.gen_k1b),
                ("k2_mix_kernel", 512, 256, 81920, k2m.gen_k2),
                ("k5_wo_kernel", 256, 256, 65536, k2g.gen_splitk_kernel('wo', 2))]
    if cfg == 'f2':
        return [("k1_qkv_kernel", 256, 256, 81920, k1b.gen_k1b),
                ("k2_mix_kernel", 512, 256, 81920, k2m.gen_k2f)]
    if cfg == 'f1':
        return [("gated_mix__softmax_full_mha__swiglu_ffn__prompt_kernel", 512, 256, 81920, k2m.gen_fused)]
    if cfg == 'h2':
        return [("k1_qkv_kernel", 256, 256, 81920, k1b.gen_k1b),
                ("k2_mix_kernel", 512, 256, 81920, k2m.gen_k2h)]
    if cfg == 'h1':
        return [("gated_mix__softmax_full_mha__swiglu_ffn__prompt_kernel", 512, 256, 81920, k2m.gen_fused2)]
    if cfg == 'h3':
        import k3
        return [("k1_qkv_kernel", 256, 256, 81920, k1b.gen_k1b),
                ("k2_mix_kernel", 768, 256, 53248, k3.gen_k3)]
    raise ValueError(cfg)
```
